```python
import torch

def _softmax(x, axis=-1):
    return torch.softmax(x, dim=axis)
def _gelu(x):
    return torch.nn.functional.gelu(x, approximate="tanh")
def _silu(x):
    return torch.nn.functional.silu(x)
def _sigmoid(x):
    return torch.sigmoid(x)
def _layernorm(x, axis=-1, eps=1e-5):
    m = x.mean(dim=axis, keepdim=True)
    v = x.var(dim=axis, keepdim=True, unbiased=False)
    return (x - m) / torch.sqrt(v + eps)
def _scatter_add(tgt, idx, src, axis=0):
    return tgt.clone().index_add_(axis, idx, src)
def _segment_sum(src, seg, n):
    out = torch.zeros((n,) + src.shape[1:], dtype=src.dtype)
    return out.index_add_(0, seg, src)
def _pad(x, pw):
    flat = tuple(v for pair in reversed(pw) for v in pair)
    return torch.nn.functional.pad(x, flat)

kernel_name = 'gated_mix__spectral_fnet__mha_block__prompt'

def setup_inputs():

    _w = (lambda a: (lambda t: t.to(torch.bfloat16) if t.is_floating_point() else t)(torch.as_tensor(a)))
    def _A_setup():
        B, S, D = 1, 2048, 512
        ns = torch.arange(S)[:, None] * torch.arange(S)[None, :]
        nd = torch.arange(D)[:, None] * torch.arange(D)[None, :]
        Ws_re = torch.cos(-2.0 * torch.pi * ns / S).to(float)
        Ws_im = torch.sin(-2.0 * torch.pi * ns / S).to(float)
        Wd_re = torch.cos(-2.0 * torch.pi * nd / D).to(float)
        Wd_im = torch.sin(-2.0 * torch.pi * nd / D).to(float)
        return {
            "x": _w((lambda *s: torch.randn(*s, dtype=torch.bfloat16) * 0.05)(B, S, D)),
            "dft_seq_re": _w(Ws_re),
            "dft_seq_im": _w(Ws_im),
            "dft_hid_re": _w(Wd_re),
            "dft_hid_im": _w(Wd_im),
        }
    _A_in = _A_setup()

    def _B_setup():
        B, S, D, H = 1, 2048, 512, 32
        return {
            "x": _w((lambda *s: torch.randn(*s, dtype=torch.bfloat16) * 0.05)(B, S, D)),
            "wqkv": _w((lambda *s: torch.randn(*s, dtype=torch.bfloat16) * 1.6)(D, 3 * D)),
            "wo": _w((lambda *s: torch.randn(*s, dtype=torch.bfloat16) * 1.6)(D, D)),
        }
    _B_in = _B_setup()

    return {
        "A_x": _A_in["x"],
        "A_dft_seq_re": _A_in["dft_seq_re"],
        "A_dft_seq_im": _A_in["dft_seq_im"],
        "A_dft_hid_re": _A_in["dft_hid_re"],
        "A_dft_hid_im": _A_in["dft_hid_im"],
        "B_x": _B_in["x"],
        "B_wqkv": _B_in["wqkv"],
        "B_wo": _B_in["wo"],
        "gate_w": _w((lambda *s: torch.randn(*s, dtype=torch.bfloat16) * 0.05)(512) * 16.0),
    }

def reference(A_x, A_dft_seq_re, A_dft_seq_im, A_dft_hid_re, A_dft_hid_im, B_x, B_wqkv, B_wo, gate_w):
    def _A_ref(x, dft_seq_re, dft_seq_im, dft_hid_re, dft_hid_im):
        a = torch.einsum("bsd,ed->bse", x, dft_hid_re)
        b = torch.einsum("bsd,ed->bse", x, dft_hid_im)
        y = torch.einsum("ts,bse->bte", dft_seq_re, a) - torch.einsum("ts,bse->bte", dft_seq_im, b)
        return y

    def _B_ref(x, wqkv, wo):
        B, S, D = x.shape
        H = 32
        Dh = D // H
        qkv = (lambda x, *d: x.permute(*d))((x @ wqkv).reshape(B, S, 3, H, Dh), 2, 0, 3, 1, 4)
        q, k, v = qkv[0], qkv[1], qkv[2]
        scores = torch.einsum("bhqd,bhkd->bhqk", q, k) * (Dh ** -0.5)
        p = _softmax(scores, axis=-1)
        o = torch.einsum("bhqk,bhkd->bhqd", p, v)
        return (lambda x, *d: x.permute(*d))(o, 0, 2, 1, 3).reshape(B, S, D) @ wo

    x = A_x
    g = _sigmoid((x * gate_w).sum(-1, keepdims=True))
    a = _A_ref(x, A_dft_seq_re, A_dft_seq_im, A_dft_hid_re, A_dft_hid_im)
    b = _B_ref(x, B_wqkv, B_wo)
    return g * a + (1 - g) * b
```

```python
import re

class Asm:
    def __init__(self):
        self.lines = []
        self._lab = 0
    def __call__(self, text):
        for ln in text.split("\n"):
            ln = ln.strip()
            if not ln: continue
            if ln.startswith(";") or ln.startswith("."):
                if re.match(r"^\.?[A-Za-z_][\w.$]*:$", ln): self.lines.append(('l', ln[:-1]))
                else: self.lines.append(('r', ln))
            elif re.match(r"^[A-Za-z_.$][\w.$]*:$", ln):
                self.lines.append(('l', ln[:-1]))
            else:
                self.lines.append(('i', ln))
    def label(self, name): self.lines.append(('l', name))
    def newlabel(self, base="L"):
        self._lab += 1
        return f"{base}_{self._lab}"
    def raw(self, t): self.lines.append(('r', t))
    def text(self):
        out = []
        for k, t in self.lines:
            if k == 'l': out.append(t + ":")
            elif k == 'r': out.append(t)
            else: out.append("    " + t)
        return "\n".join(out) + "\n"

_reg = re.compile(r"^(-|abs\()?\s*([vas])(\d+)\)?$")
_rng = re.compile(r"^(-)?([vas])\[(\d+):(\d+)\]$")
def regs_of(op):
    op = op.strip()
    m = _rng.match(op)
    if m: return [(m.group(2), i) for i in range(int(m.group(3)), int(m.group(4)) + 1)]
    m = _reg.match(op)
    if m: return [(m.group(2), int(m.group(3)))]
    if op in ("vcc",): return [('s', 106), ('s', 107)]
    if op == "vcc_lo": return [('s', 106)]
    if op == "vcc_hi": return [('s', 107)]
    if op == "exec": return [('x', 0), ('x', 1)]
    if op == "exec_lo": return [('x', 0)]
    if op == "exec_hi": return [('x', 1)]
    if op == "m0": return [('m', 0)]
    return []

def split_ops(s):
    ops, depth, cur = [], 0, ""
    for ch in s:
        if ch in "[(": depth += 1
        if ch in "])": depth -= 1
        if ch == "," and depth == 0: ops.append(cur.strip()); cur = ""
        else: cur += ch
    if cur.strip(): ops.append(cur.strip())
    return ops

TRANS = ("v_exp_", "v_log_", "v_rcp_", "v_rsq_", "v_sqrt_", "v_sin_", "v_cos_")

class Ins:
    def __init__(self, text):
        self.text = text
        t = text.split(";")[0].split("//")[0].strip()
        parts = t.split(None, 1)
        self.op = parts[0]
        rest = parts[1] if len(parts) > 1 else ""
        ops = split_ops(rest)
        self.mods = ""
        if ops:
            last = ops[-1].split(None, 1)
            ops[-1] = last[0]
            if len(last) > 1: self.mods = last[1]
        self.ops = ops
        op = self.op
        self.is_mfma = op.startswith("v_mfma")
        self.is_valu = op.startswith("v_") and not self.is_mfma
        self.is_trans = op.startswith(TRANS)
        self.is_ds = op.startswith("ds_")
        self.is_vmem = op.startswith(("buffer_", "global_", "flat_"))
        self.is_salu = op.startswith("s_")
        self.is_dpp = ("_dpp" in op) or any(k in self.mods for k in ("row_shr", "row_shl", "row_ror", "row_bcast", "quad_perm", "row_mirror", "row_half_mirror", "wave_", "row_newbcast"))
        self.is_sdwa = "_sdwa" in op or "op_sel" in self.mods and not op.startswith("v_pk_")
        self.is_perml = op.startswith("v_permlane")
        self.is_rl = op.startswith(("v_readlane", "v_readfirstlane"))
        self.w = set(); self.r = set()
        self.A = self.B = self.C = self.D = set()
        self.store_data = set()
        self.nstates = 1
        if op == "s_nop": self.nstates = int(ops[0], 0) + 1
        R = lambda i: set(regs_of(ops[i])) if i < len(ops) else set()
        if self.is_mfma:
            self.D, self.A, self.B, self.C = R(0), R(1), R(2), R(3)
            self.w = set(self.D); self.r = self.A | self.B | self.C
            self.passes = 8 if "32x32x16" in op or "32x32x8" in op else 4 if ("16x16x32" in op or "16x16x16" in op) else None
            assert self.passes, op
        elif self.is_valu:
            if op.startswith("v_cmp"):
                self.w = R(0); self.r = R(1) | R(2)
                if op.startswith("v_cmpx"): raise ValueError("avoid v_cmpx")
            elif self.is_perml and "swap" in op:
                self.w = R(0) | R(1); self.r = R(0) | R(1)
            elif op.startswith(("v_add_co", "v_sub_co", "v_addc_co", "v_subb_co", "v_subrev_co")):
                self.w = R(0) | R(1); self.r = set().union(*[R(i) for i in range(2, len(ops))])
            elif op.startswith(("v_mad_u64_u32",)):
                self.w = R(0) | R(1); self.r = set().union(*[R(i) for i in range(2, len(ops))])
            else:
                self.w = R(0); self.r = set().union(*[R(i) for i in range(1, len(ops))]) if len(ops) > 1 else set()
                if op.startswith(("v_fmac", "v_dot2c", "v_mac", "v_pk_fmac", "v_writelane")) or "UNUSED_PRESERVE" in self.mods or self.is_dpp:
                    self.r |= R(0)
                if op.startswith("v_cndmask") and len(ops) == 3: self.r |= {('s', 106), ('s', 107)}
        elif self.is_ds:
            if op.startswith(("ds_read", "ds_bpermute", "ds_permute", "ds_swizzle")):
                self.w = R(0); self.r = set().union(*[R(i) for i in range(1, len(ops))])
            else:
                self.r = set().union(*[R(i) for i in range(len(ops))])
        elif self.is_vmem:
            lds = re.search(r"\blds\b", self.mods) is not None or "_lds_" in op
            self.is_dma = lds
            if op.startswith(("buffer_inv", "buffer_wbl2")):
                pass
            elif op.startswith("buffer_load"):
                if lds: self.r = set().union(*[R(i) for i in range(len(ops))])
                else:
                    self.w = R(0); self.r = set().union(*[R(i) for i in range(1, len(ops))])
                    if "d16" in op: self.r |= R(0)
            elif op.startswith("buffer_store"):
                self.r = set().union(*[R(i) for i in range(len(ops))])
                if "x4" in op or "x3" in op: self.store_data = R(0)
            elif op.startswith("buffer_atomic"):
                self.r = set().union(*[R(i) for i in range(len(ops))])
                if "sc0" in self.mods: self.w = R(0)
            elif op.startswith("global_load"):
                if lds: self.r = set().union(*[R(i) for i in range(len(ops))])
                else:
                    self.w = R(0); self.r = set().union(*[R(i) for i in range(1, len(ops))])
            elif op.startswith("global_store"):
                self.r = set().union(*[R(i) for i in range(len(ops))])
                if "x4" in op or "x3" in op: self.store_data = R(1)
            elif op.startswith("global_atomic"):
                self.r = set().union(*[R(i) for i in range(len(ops))])
            if lds: self.r |= {('m', 0)}
        elif self.is_salu:
            if op.startswith(("s_cmp", "s_bitcmp", "s_cbranch", "s_branch", "s_waitcnt", "s_barrier", "s_nop", "s_endpgm", "s_sleep", "s_setprio", "s_setpc")):
                self.r = set().union(*[R(i) for i in range(len(ops))]) if ops else set()
            else:
                self.w = R(0); self.r = set().union(*[R(i) for i in range(1, len(ops))]) if len(ops) > 1 else set()
                if "saveexec" in op: self.w |= {('x', 0), ('x', 1)}
        if not hasattr(self, "is_dma"): self.is_dma = False
    def vw(self): return {x for x in self.w if x[0] in "va"}
    def sw(self): return {x for x in self.w if x[0] == "s"}

def need(p, c):
    n = 0
    vreg = lambda S: {x for x in S if x[0] in "va"}
    sreg = lambda S: {x for x in S if x[0] == "s"}
    if p.is_valu:
        pw = vreg(p.w); ps = sreg(p.w)
        if c.is_mfma and pw & c.r: n = max(n, 2)
        if p.is_trans and c.is_valu and not c.is_trans and pw & (c.r): n = max(n, 1)
        if p.is_trans and c.is_valu and c.is_trans and pw & c.r: n = max(n, 1)
        if p.is_trans and (c.is_ds or c.is_vmem) and pw & c.r: n = max(n, 1)
        if c.is_rl and pw & c.r: n = max(n, 1)
        if c.is_valu and c.is_dpp and pw & c.r: n = max(n, 2)
        if c.is_perml and pw & c.r: n = max(n, 2)
        if p.is_sdwa and c.is_valu and pw & (c.r | c.w): n = max(n, 1)
        if p.op.startswith("v_dot") and pw & (c.r | c.w):
            same = c.op == p.op
            if same and len(c.ops) == 4 and pw == set(regs_of(c.ops[3])) and not (pw & (set(regs_of(c.ops[1])) | set(regs_of(c.ops[2])))): pass
            else: n = max(n, 3)
        if ps:
            if c.is_valu and ps & c.r: n = max(n, 4 if (c.is_rl or c.op.startswith("v_writelane")) else 2)
            if c.is_vmem and ps & c.r: n = max(n, 5)
            if c.is_salu and ps & c.r: n = max(n, 3)
            if c.op.startswith("s_cbranch_vcc") and ps & {('s',106),('s',107)}: n = max(n, 5)
    if p.is_mfma:
        P = p.passes
        if c.is_mfma:
            if p.D & c.C:
                if p.D == c.C and c.D == c.C and c.passes == P: n = max(n, 0 if P >= 4 else 2)
                elif p.D == c.C and c.passes == P: n = max(n, 0 if P >= 4 else 2)
                else: n = max(n, {2:4,4:6,8:10,16:18}[P])
            if p.D & (c.A | c.B): n = max(n, {2:5,4:8,8:12,16:20}[P])
            if (p.D & c.D) and not (p.D & c.C): n = max(n, {2:5,4:8,8:12,16:20}[P])
        else:
            if (c.is_valu or c.is_vmem or c.is_ds) and p.D & (c.r | c.w): n = max(n, {2:5,4:8,8:12,16:20}[P])
            if c.is_valu and (p.C - p.D) & c.w: n = max(n, {2:1,4:3,8:7,16:15}[P])
            if (c.is_ds or c.is_vmem) and (p.C - p.D) & c.w: n = max(n, {2:1,4:3,8:7,16:15}[P])
    if p.is_salu and ('m', 0) in p.w and (c.is_dma or c.op.startswith("s_sendmsg")): n = max(n, 1)
    if p.store_data and (p.store_data & c.w):
        n = max(n, 2 if c.is_valu or c.is_mfma else 1)
    return n

BR = ("s_branch", "s_cbranch")
def fix_hazards(asm, verbose=False):
    inserted = 0
    while True:
        items = asm.lines
        ins = {}
        labpos = {}
        for idx, (k, t) in enumerate(items):
            if k == 'i': ins[idx] = Ins(t)
            elif k == 'l': labpos[t] = idx
        srcs = {}
        for idx, I in ins.items():
            if I.op.startswith(BR):
                srcs.setdefault(I.ops[0], []).append(idx)
        def preds(idx):
            res = []
            j = idx - 1
            while j >= 0:
                k, t = items[j]
                if k == 'l':
                    res += srcs.get(t, [])
                elif k == 'i':
                    I = ins[j]
                    if not (I.op in ("s_branch", "s_endpgm") or I.op.startswith("s_setpc")): res.append(j)
                    break
                j -= 1
            return res
        fix = None
        for idx in sorted(ins):
            c = ins[idx]
            if c.is_salu and not c.r and not c.op.startswith("s_cbranch"): continue
            worst = 0
            stack = [(p, 0) for p in preds(idx)]
            seen = {}
            while stack:
                p, d = stack.pop()
                if d >= 20: continue
                if p in seen and seen[p] <= d: continue
                seen[p] = d
                P = ins[p]
                n = need(P, c)
                if n - d > worst: worst = n - d
                nd = d + P.nstates
                for q in preds(p): stack.append((q, nd))
            if worst > 0:
                fix = (idx, worst); break
        if not fix: break
        idx, w = fix
        if verbose: print("hazard: insert", w, "before", items[idx][1])
        new = []
        while w > 0:
            k = min(w, 16); new.append(('i', f"s_nop {k-1}")); w -= k
        items[idx:idx] = new
        inserted += 1
    return inserted
```

```python
import math
NAME = "gated_mix__spectral_fnet__mha_block__prompt"
MB = 1 << 20
WS_KV = 0
WS_Q = 4 * MB
WS_Z = 6 * MB
WS_O = 8 * MB
WS_Y = 10 * MB
WS_WOF = 12 * MB
WS_G = 13 * MB
WS_FLAG = 14 * MB
WS_SIZE = 17 * MB
QSCALE = 0.25 * math.log2(math.e)

import struct
def f2u(f): return struct.unpack("<I", struct.pack("<f", f))[0]

def srd(a, dst, lo, hi, size):
    a(f"s_mov_b32 s{dst}, s{lo}")
    a(f"s_and_b32 s{dst+1}, s{hi}, 0xffff")
    a(f"s_mov_b32 s{dst+2}, {size:#x}")
    a(f"s_mov_b32 s{dst+3}, 0x20000")

def kernel_header(a, name):
    a.raw(".text")
    a.raw(f".globl {name}")
    a.raw(".p2align 8")
    a.raw(f".type {name},@function")
    a.label(name)

def kernel_desc(name, vgpr, sgpr=102, accum=None):
    if accum is None: accum = (vgpr + 3) // 4 * 4
    return f""".section .rodata,"a"
.p2align 6
.amdhsa_kernel {name}
  .amdhsa_next_free_vgpr {vgpr}
  .amdhsa_next_free_sgpr {sgpr}
  .amdhsa_accum_offset {accum}
  .amdhsa_group_segment_fixed_size 0
  .amdhsa_kernarg_size 96
  .amdhsa_user_sgpr_count 2
  .amdhsa_user_sgpr_kernarg_segment_ptr 1
  .amdhsa_system_sgpr_workgroup_id_x 1
  .amdhsa_float_denorm_mode_32 3
.end_amdhsa_kernel
.text
"""

def decode_gj(a, sg, sj, tmp):
    a(f"s_and_b32 s{sg}, s2, 7")
    a(f"s_lshr_b32 s{tmp}, s2, 3")
    a(f"s_and_b32 s{sj}, s{tmp}, 15")
    a(f"s_lshr_b32 s{tmp}, s{tmp}, 4")
    a(f"s_lshl_b32 s{tmp}, s{tmp}, 3")
    a(f"s_add_u32 s{sg}, s{sg}, s{tmp}")

WS_STAMP = 15 * MB
class Stamps:
    ALLREAL = False
    def __init__(self, a, on, base=80):
        self.a=a; self.on=on; self.base=base; self.n=0; self.names=[]
    def __call__(self, name, real=False):
        if not self.on: return
        a=self.a
        if self.n>=20: return
        a("s_memrealtime s[78:79]" if (real or Stamps.ALLREAL) else "s_memtime s[78:79]")
        a("s_waitcnt lgkmcnt(0)")
        a(f"s_mov_b32 s{self.base+self.n}, s78")
        self.n+=1; self.names.append(name)
    def dump(self, sws, swave, region=0):
        if not self.on: return
        a=self.a
        a(f"s_lshl_b32 s76, s2, 4")
        a(f"s_add_u32 s76, s76, s{swave}")
        a(f"s_lshl_b32 s76, s76, 7")
        a(f"s_add_u32 s76, s76, {WS_STAMP + region*(1<<19):#x}")
        a("v_mov_b32 v1, 0")
        a("s_mov_b64 exec, 1")
        for i in range(self.n):
            a(f"v_mov_b32 v0, s{self.base+i}")
            a(f"buffer_store_dword v0, v1, s[{sws}:{sws+3}], s76 offen offset:{4*i}")
        a("s_mov_b64 exec, -1")
        a("s_waitcnt vmcnt(0)")
```

```python
from asmlib import *
from common import *

def gen_k1(a, name="k1_kernel", sc="", stamps=False):
    kernel_header(a, name)
    L_done = a.newlabel("K1_done")
    a(f"s_cmp_ge_u32 s2, 256")
    a(f"s_cbranch_scc1 {L_done}")
    st = Stamps(a, stamps)
    st("real0", real=True); st("t0")
    a("s_load_dwordx2 s[4:5], s[0:1], 0")
    a("s_load_dwordx4 s[8:11], s[0:1], 24")
    a("s_load_dwordx4 s[12:15], s[0:1], 48")
    a("s_load_dwordx2 s[16:17], s[0:1], 64")
    a("s_load_dwordx2 s[18:19], s[0:1], 88")
    G, J, W, TL, HH = 40, 41, 42, 43, 44
    decode_gj(a, G, J, 45)
    a("v_lshrrev_b32 v1, 6, v0")
    a("v_and_b32 v2, 63, v0")
    a(f"v_readfirstlane_b32 s{W}, v1")
    a(f"s_and_b32 s{TL}, s{W}, 3")
    a(f"s_lshr_b32 s{HH}, s{W}, 2")
    a("s_waitcnt lgkmcnt(0)")
    st("karg")
    SX, SB, SWS, SWO, SGW = 20, 24, 28, 32, 36
    srd(a, SX, 4, 5, 2048 * 1024)
    srd(a, SWS, 18, 19, WS_SIZE)
    srd(a, SWO, 14, 15, 512 * 1024)
    srd(a, SGW, 16, 17, 1024)
    a(f"s_cmp_eq_u32 s{W}, 6")
    a("s_cselect_b32 s46, s8, s12")
    a("s_cselect_b32 s47, s9, s13")
    a(f"s_cmp_eq_u32 s{W}, 7")
    a("s_cselect_b32 s46, s10, s46")
    a("s_cselect_b32 s47, s11, s47")
    a(f"s_cmp_ge_u32 s{W}, 6")
    a(f"s_mov_b32 s48, {512*3072:#x}")
    a(f"s_mov_b32 s49, {64*3072:#x}")
    a(f"s_cselect_b32 s48, {512*1024:#x}, s48")
    a(f"s_cselect_b32 s49, 128, s49")
    a(f"s_mov_b32 s{SB}, s46")
    a(f"s_and_b32 s{SB+1}, s47, 0xffff")
    a(f"s_mov_b32 s{SB+2}, s48")
    a(f"s_mov_b32 s{SB+3}, 0x20000")

    a(f"s_lshl_b32 s50, s{G}, 1")
    a(f"s_add_u32 s50, s50, s{HH}")
    a(f"s_lshl_b32 s51, s{J}, 2")
    a(f"s_add_u32 s51, s51, s{TL}")
    TAU = 51
    a(f"s_lshl_b32 s52, s50, 6")
    a(f"s_add_u32 s52, s52, s{TAU}")
    a(f"s_lshl_b32 s52, s52, 10")
    a("v_lshlrev_b32 v3, 4, v2")
    a(f"buffer_load_dwordx4 v[96:99], v3, s[{SX}:{SX+3}], s52 offen")
    a(f"buffer_load_dwordx4 v[100:103], v3, s[{SGW}:{SGW+3}], 0 offen")
    L_nowo = a.newlabel("K1_nowo")
    a(f"s_cmp_ge_u32 s{W}, 2")
    a(f"s_cbranch_scc1 {L_nowo}")
    a(f"s_lshl_b32 s53, s2, 1")
    a(f"s_add_u32 s53, s53, s{W}")
    a("s_lshr_b32 s54, s53, 5")
    a("s_and_b32 s55, s53, 31")
    a("s_lshl_b32 s55, s55, 14")
    a("s_lshl_b32 s54, s54, 6")
    a("s_add_u32 s55, s55, s54")
    a("v_lshrrev_b32 v4, 5, v2")
    a("v_lshlrev_b32 v4, 12, v4")
    a("v_and_b32 v5, 31, v2")
    a("v_lshl_add_u32 v4, v5, 1, v4")
    a("v_add_u32 v5, 0x2000, v4")
    for j in range(8):
        va = "v4" if j < 4 else "v5"
        a(f"buffer_load_ushort v{104+j}, {va}, s[{SWO}:{SWO+3}], s55 offen offset:{(j % 4) * 1024}")
    a.label(L_nowo)

    a("v_lshrrev_b32 v4, 4, v2")
    a("v_and_b32 v5, 7, v2")
    a("v_xor_b32 v6, v4, v5")
    a("v_xor_b32 v7, 4, v6")
    a("v_lshrrev_b32 v8, 3, v2")
    a(f"s_and_b32 s56, s{W}, 1")
    a("s_lshl_b32 s56, s56, 4")
    a(f"s_lshr_b32 s57, s{W}, 1")
    a(f"s_lshl_b32 s58, s{J}, 2")
    a("s_add_u32 s57, s57, s58")
    a("s_lshl_b32 s58, s56, 6")
    a("s_add_u32 s57, s57, s58")
    a("s_lshl_b32 s57, s57, 10")
    a("v_lshlrev_b32 v9, 16, v8")
    a("v_add_u32 v9, s57, v9")
    a("v_lshl_add_u32 v92, v6, 4, v9")
    a("v_lshl_add_u32 v93, v7, 4, v9")
    a(f"v_add_u32 v93, {8*64*1024 - 1024:#x}, v93")
    L_F = a.newlabel("K1_F"); L_Bdone = a.newlabel("K1_Bd")
    a(f"s_cmp_ge_u32 s{W}, 6")
    a(f"s_cbranch_scc1 {L_F}")
    for b in range(2):
        a(f"s_lshl_b32 s56, s{W}, 3")
        a(f"s_add_u32 s56, s56, {4*b}")
        a("v_add_u32 v10, s56, v4")
        a("v_mul_u32_u24 v11, 43, v10")
        a("v_lshrrev_b32 v11, 7, v11")
        a("v_mul_u32_u24 v12, 3, v11")
        a("v_sub_u32 v12, v10, v12")
        a("v_and_b32 v13, 15, v2")
        a("v_lshrrev_b32 v13, 2, v13")
        a("v_lshl_add_u32 v13, v11, 2, v13")
        a("v_mul_u32_u24 v13, 0xc00, v13")
        a("v_lshl_add_u32 v13, v12, 10, v13")
        a("v_and_b32 v14, 3, v2")
        a("v_and_b32 v15, 1, v12")
        a("v_lshlrev_b32 v15, 1, v15")
        a("v_xor_b32 v14, v14, v15")
        a("v_lshl_add_u32 v13, v14, 4, v13")
        a(f"s_lshl_b32 s56, s{G}, 6")
        if b == 1: a("s_sub_u32 s56, s56, 1024")
        a(f"v_add_u32 v{94+b}, s56, v13")
    a(f"s_branch {L_Bdone}")
    a.label(L_F)
    a(f"s_lshl_b32 s56, s{G}, 14")
    a("v_lshlrev_b32 v9, 10, v8")
    a("v_add_u32 v9, s56, v9")
    a("v_lshl_add_u32 v94, v6, 4, v9")
    a("v_lshl_add_u32 v95, v7, 4, v9")
    a(f"v_add_u32 v95, {8*1024 - 1024:#x}, v95")
    a.label(L_Bdone)

    a(f"s_lshl_b32 s60, s{W}, 11")
    a("s_mov_b32 s61, 0")
    a("s_mov_b32 s62, 0")
    def issue_chunk(c):
        stg = (c % 4) * 32768
        a(f"s_add_u32 m0, s60, {stg}")
        a(f"buffer_load_dwordx4 v92, s[{SX}:{SX+3}], s61 offen lds")
        a(f"buffer_load_dwordx4 v93, s[{SX}:{SX+3}], s61 offen offset:1024 lds")
        a(f"s_add_u32 m0, s60, {stg + 16384}")
        a(f"buffer_load_dwordx4 v94, s[{SB}:{SB+3}], s62 offen lds")
        a(f"buffer_load_dwordx4 v95, s[{SB}:{SB+3}], s62 offen offset:1024 lds")
        a("s_add_u32 s61, s61, 128")
        a("s_add_u32 s62, s62, s49")
    for c in range(3): issue_chunk(c)
    st("issued")

    a("v_and_b32 v4, 31, v2")
    a("v_lshrrev_b32 v5, 5, v2")
    a("v_lshrrev_b32 v6, 1, v4")
    a("v_and_b32 v6, 7, v6")
    a("v_lshlrev_b32 v7, 7, v4")
    a(f"s_lshl_b32 s56, s{TL}, 12")
    for ks in range(4):
        a(f"v_add_u32 v8, {2*ks}, v5")
        a("v_xor_b32 v8, v8, v6")
        a("v_lshl_add_u32 v8, v8, 4, v7")
        a(f"v_add_u32 v{72+ks}, s56, v8")
        a(f"v_add_u32 v{76+ks}, 0x10000, v{72+ks}")
        a(f"v_add_u32 v{84+ks}, {28672}, v8")
        a(f"v_add_u32 v{88+ks}, {28672+65536}, v8")
    a("v_lshrrev_b32 v8, 4, v2")
    a("v_and_b32 v8, 1, v8")
    a("v_and_b32 v9, 15, v2")
    a("v_lshrrev_b32 v10, 2, v9")
    a("v_and_b32 v9, 3, v9")
    a("v_lshlrev_b32 v10, 6, v10")
    a("v_lshl_add_u32 v10, v9, 3, v10")
    a("v_mul_u32_u24 v11, 1536, v5")
    a("v_add3_u32 v10, v10, v11, 0")
    a(f"v_add_u32 v10, 16384, v10")
    a(f"v_xor_b32 v11, s{HH}, v8")
    a("v_lshlrev_b32 v11, 5, v11")
    a("v_lshl_add_u32 v11, v8, 8, v11")
    a("v_add_u32 v80, v10, v11")
    a("v_add_u32 v81, 0x10000, v80")
    a("v_lshlrev_b32 v11, 5, v8")
    a("v_add3_u32 v82, v10, v11, 0")
    a("v_add_u32 v82, 512, v82")
    a("v_add_u32 v83, 0x10000, v82")
    for r in range(16, 48): a(f"v_mov_b32 v{r}, 0")
    a("v_mov_b32 v8, 0xbf803f80")
    for r in (9, 10, 11): a(f"v_mov_b32 v{r}, v8")
    a(f"v_lshlrev_b32 v12, 4, v2")
    a(f"v_add_u32 v12, {28672 + 16*128}, v12")
    a(f"s_lshl_b32 s63, s{G}, 3")
    a(f"s_or_b32 s63, s63, s{W}")
    a("s_mov_b64 s[64:65], 0xff")

    def main_loop(role):
        XF = [48, 52]; WA = [56, 60]; WB = [64, 68]
        def reads(c, ks):
            stg = c % 4
            setb = stg >= 2
            off = (stg % 2) * 32768
            bi = ks % 2
            xa = (76 if setb else 72) + ks
            a(f"ds_read_b128 v[{XF[bi]}:{XF[bi]+3}], v{xa} offset:{off}")
            wa = 81 if setb else 80
            a(f"ds_read_b64_tr_b16 v[{WA[bi]}:{WA[bi]+1}], v{wa} offset:{off + ks*3072}")
            a(f"ds_read_b64_tr_b16 v[{WA[bi]+2}:{WA[bi]+3}], v{wa} offset:{off + ks*3072 + 768}")
            if role == 0:
                wb = 83 if setb else 82
                a(f"ds_read_b64_tr_b16 v[{WB[bi]}:{WB[bi]+1}], v{wb} offset:{off + ks*3072}")
                a(f"ds_read_b64_tr_b16 v[{WB[bi]+2}:{WB[bi]+3}], v{wb} offset:{off + ks*3072 + 768}")
                return 5
            else:
                fa = (88 if setb else 84) + ks
                a(f"ds_read_b128 v[{WB[bi]}:{WB[bi]+3}], v{fa} offset:{off}")
                return 4
        for c in range(8):
            rem = min(7, c + 2) - c
            a(f"s_waitcnt vmcnt({4*rem})")
            if role == 1:
                Ls = a.newlabel("K1_nofix")
                a("s_cmp_lg_u32 s63, 7")
                a(f"s_cbranch_scc1 {Ls}")
                a("s_mov_b64 exec, s[64:65]")
                stg = (c % 4) * 32768
                if stg >= 65536:
                    a(f"v_add_u32 v13, 0x10000, v12")
                    a(f"ds_write_b128 v13, v[8:11] offset:{stg-65536}")
                else:
                    a(f"ds_write_b128 v12, v[8:11] offset:{stg}")
                a("s_mov_b64 exec, -1")
                a("s_waitcnt lgkmcnt(0)")
                a.label(Ls)
            a("s_barrier")
            if role == 0: st(f"bar{c}")
            if c + 3 <= 7: issue_chunk(c + 3)
            n = reads(c, 0)
            n = reads(c, 1)
            for ks in range(4):
                bi = ks % 2
                a(f"s_waitcnt lgkmcnt({n if ks < 3 else 0})")
                a(f"v_mfma_f32_32x32x16_bf16 v[16:31], v[{WA[bi]}:{WA[bi]+3}], v[{XF[bi]}:{XF[bi]+3}], v[16:31]")
                a(f"v_mfma_f32_32x32x16_bf16 v[32:47], v[{XF[bi]}:{XF[bi]+3}], v[{WB[bi]}:{WB[bi]+3}], v[32:47]")
                if ks + 2 < 4: reads(c, ks + 2)

    L_r1 = a.newlabel("K1_role1"); L_epi = a.newlabel("K1_epi")
    a(f"s_cmp_eq_u32 s{HH}, 1")
    a(f"s_cbranch_scc1 {L_r1}")
    main_loop(0)
    st("loopend")
    def tileA_epi():
        a(f"s_mov_b32 s56, {f2u(QSCALE):#x}")
        for r in range(8): a(f"v_mul_f32 v{16+r}, s56, v{16+r}")
        for r in range(4): a(f"v_cvt_pk_bf16_f32 v{48+r}, v{16+2*r}, v{17+2*r}")
        for r in range(4): a(f"v_cvt_pk_bf16_f32 v{52+r}, v{24+2*r}, v{25+2*r}")
        a("v_lshlrev_b32 v3, 4, v2")
        a(f"s_lshl_b32 s56, s{TAU}, 5")
        a(f"s_lshl_b32 s57, s{G}, 1")
        a("s_add_u32 s56, s56, s57")
        a(f"s_add_u32 s56, s56, s{HH}")
        a("s_lshl_b32 s56, s56, 10")
        a(f"s_add_u32 s56, s56, {WS_Q:#x}")
        a(f"buffer_store_dwordx4 v[48:51], v3, s[{SWS}:{SWS+3}], s56 offen {sc}")
        a(f"s_lshl_b32 s58, s{G}, 4")
        a(f"s_add_u32 s58, s58, s{J}")
        a("s_lshl_b32 s58, s58, 14")
        if WS_KV: a(f"s_add_u32 s58, s58, {WS_KV:#x}")
        a(f"s_lshl_b32 s57, s{TL}, 11")
        a("s_add_u32 s58, s58, s57")
        a(f"s_lshl_b32 s57, s{HH}, 13")
        a("s_add_u32 s57, s57, s58")
        a(f"buffer_store_dwordx4 v[52:55], v3, s[{SWS}:{SWS+3}], s57 offen {sc}")
    tileA_epi()
    for r in range(8): a(f"v_cvt_pk_bf16_f32 v{56+r}, v{32+2*r}, v{33+2*r}")
    a("v_and_b32 v4, 15, v2")
    a("v_lshrrev_b32 v5, 5, v2")
    a("v_lshl_add_u32 v4, v5, 4, v4")
    a("v_lshlrev_b32 v4, 4, v4")
    a("v_lshrrev_b32 v5, 4, v2")
    a("v_and_b32 v5, 1, v5")
    a("v_lshl_add_u32 v4, v5, 13, v4")
    a(f"buffer_store_dwordx4 v[56:59], v4, s[{SWS}:{SWS+3}], s58 offen offset:1024 {sc}")
    a(f"buffer_store_dwordx4 v[60:63], v4, s[{SWS}:{SWS+3}], s58 offen offset:1536 {sc}")
    a(f"s_branch {L_epi}")
    a.label(L_r1)
    main_loop(1)
    tileA_epi()
    for r in range(8): a(f"v_cvt_pk_bf16_f32 v{56+r}, v{32+2*r}, v{33+2*r}")
    a("v_and_b32 v4, 15, v2")
    a("v_lshlrev_b32 v4, 13, v4")
    a("v_lshrrev_b32 v5, 4, v2")
    a("v_and_b32 v5, 1, v5")
    a("v_lshl_add_u32 v4, v5, 12, v4")
    a("v_lshrrev_b32 v5, 5, v2")
    a("v_lshl_add_u32 v4, v5, 9, v4")
    a(f"s_lshl_b32 s56, s{G}, 17")
    a(f"s_lshr_b32 s57, s{TAU}, 5")
    a("s_lshl_b32 s57, s57, 10")
    a("s_add_u32 s56, s56, s57")
    a(f"s_and_b32 s57, s{TAU}, 31")
    a("s_lshl_b32 s57, s57, 4")
    a("s_add_u32 s56, s56, s57")
    a(f"s_add_u32 s56, s56, {WS_Z:#x}")
    a(f"buffer_store_dwordx4 v[56:59], v4, s[{SWS}:{SWS+3}], s56 offen {sc}")
    a(f"buffer_store_dwordx4 v[60:63], v4, s[{SWS}:{SWS+3}], s56 offen offset:2048 {sc}")
    a.label(L_epi)
    a("v_mov_b32 v4, 0")
    for r in range(4): a(f"v_dot2_f32_bf16 v4, v{96+r}, v{100+r}, v4")
    for sh in (1, 2, 4, 8):
        a(f"v_add_f32_dpp v4, v4, v4 row_shr:{sh} row_mask:0xf bank_mask:0xf bound_ctrl:0")
    a("v_add_f32_dpp v4, v4, v4 row_bcast:15 row_mask:0xa bank_mask:0xf")
    a("v_add_f32_dpp v4, v4, v4 row_bcast:31 row_mask:0xc bank_mask:0xf")
    a(f"s_mov_b32 s56, {f2u(-math.log2(math.e)):#x}")
    a("v_mul_f32 v4, s56, v4")
    a("v_exp_f32 v4, v4")
    a("v_add_f32 v4, 1.0, v4")
    a("v_rcp_f32 v4, v4")
    a(f"s_lshl_b32 s56, s{TAU}, 5")
    a("s_add_u32 s56, s56, s50")
    a("s_lshl_b32 s56, s56, 2")
    a(f"s_add_u32 s56, s56, {WS_G:#x}")
    a("v_mov_b32 v5, 0")
    a("s_mov_b32 exec_lo, 0")
    a("s_mov_b32 exec_hi, 0x80000000")
    a(f"buffer_store_dword v4, v5, s[{SWS}:{SWS+3}], s56 offen {sc}")
    a("s_mov_b64 exec, -1")
    L_nowo2 = a.newlabel("K1_nowo2")
    a(f"s_cmp_ge_u32 s{W}, 2")
    a(f"s_cbranch_scc1 {L_nowo2}")
    for r in range(4): a(f"v_lshl_or_b32 v{104+r}, v{105+2*r}, 16, v{104+2*r}")
    a("s_lshl_b32 s56, s53, 10")
    a(f"s_add_u32 s56, s56, {WS_WOF:#x}")
    a(f"buffer_store_dwordx4 v[104:107], v3, s[{SWS}:{SWS+3}], s56 offen {sc}")
    a.label(L_nowo2)
    st("pre_final")
    a("s_waitcnt vmcnt(0)")
    st("end"); st("real1", real=True)
    st.dump(SWS, W)
    gen_k1.names = st.names
    a.label(L_done)
    a("s_endpgm")
    return 116
```

```python
from asmlib import *
from common import *
from tables import *

SA, SBr, NM, OA = 0, 16, 32, 48
QF = 64; KF = [68, 72]; VF = [[76, 80], [84, 88]]; P0 = 92; P1 = 96
VK, VKN, VV, VVN, VKB, VVB, VLANE, VT0, VT1, VDMA = 100, 101, 102, 103, 104, 105, 106, 107, 108, 109

def attn_tile(a, t, first_wait=True):
    X = SA if t % 2 == 0 else SBr
    Y = SBr if t % 2 == 0 else SA
    Kn = KF[(t + 1) % 2]; Kf = KF[t % 2]
    Vc = VF[t % 2]; Vn = VF[(t + 1) % 2]
    E = lambda i: a(f"v_exp_f32 v{X+i}, v{X+i}")
    def C(i):
        dst = (P0 + i // 2) if i < 8 else (P1 + (i - 8) // 2)
        a(f"v_cvt_pk_bf16_f32 v{dst}, v{X+i}, v{X+i+1}")
    a("s_waitcnt lgkmcnt(0)")
    a(f"v_mfma_f32_32x32x16_bf16 v[{Y}:{Y+15}], v[{Kn}:{Kn+3}], v[{QF}:{QF+3}], v[{NM}:{NM+15}]")
    E(0); E(1)
    a(f"v_mfma_f32_32x32x16_bf16 v[{OA}:{OA+15}], v[{Vn[1]}:{Vn[1]+3}], v[{P1}:{P1+3}], v[{OA}:{OA+15}]")
    a("s_mov_b64 exec, s[70:71]")
    if t < 3: va, off = VV, (t + 1) * 2048
    else: va, off = VVN, 0
    a(f"ds_read_b128 v[{Vn[0]}:{Vn[0]+3}], v{va} offset:{off + 1024}")
    a(f"ds_read_b128 v[{Vn[1]}:{Vn[1]+3}], v{va} offset:{off + 1536}")
    a("s_mov_b64 exec, -1")
    if t < 2: ka, off = VK, (t + 2) * 2048
    else: ka, off = VKN, (t - 2) * 2048
    a(f"ds_read_b128 v[{Kf}:{Kf+3}], v{ka} offset:{off}")
    E(2); C(0); E(3); E(4); C(2); E(5); E(6); C(4); E(7); E(8); C(6); E(9); E(10)
    a(f"v_mfma_f32_32x32x16_bf16 v[{OA}:{OA+15}], v[{Vc[0]}:{Vc[0]+3}], v[{P0}:{P0+3}], v[{OA}:{OA+15}]")
    C(8); E(11); E(12); C(10); E(13); E(14); C(12); E(15)
    a("s_nop 0")
    C(14)

def gen_k2(a, name="k2_kernel", sc="", stamps=False, do_fft=True):
    kernel_header(a, name)
    L_done = a.newlabel("K2_done")
    st = Stamps(a, stamps)
    a("s_cmp_ge_u32 s2, 256")
    a(f"s_cbranch_scc1 {L_done}")
    st("real0", real=True); st("t0")
    a("s_load_dwordx2 s[18:19], s[0:1], 88")
    G, J, W, TL, HH, TAU = 40, 41, 42, 43, 44, 51
    decode_gj(a, G, J, 45)
    a("v_lshrrev_b32 v1, 6, v0")
    a(f"v_and_b32 v{VLANE}, 63, v0")
    a(f"v_readfirstlane_b32 s{W}, v1")
    a(f"s_and_b32 s{TL}, s{W}, 3")
    a(f"s_lshr_b32 s{HH}, s{W}, 2")
    a(f"s_lshl_b32 s{TAU}, s{J}, 2")
    a(f"s_add_u32 s{TAU}, s{TAU}, s{TL}")
    SWS = 28
    a(f"s_lshl_b32 s60, s{W}, 11")
    a(f"v_lshlrev_b32 v{VT0}, 4, v{VLANE}")
    a(f"v_add_u32 v{VDMA}, s60, v{VT0}")
    a("s_waitcnt lgkmcnt(0)")
    srd(a, SWS, 18, 19, WS_SIZE)
    a(f"s_lshl_b32 s56, s{TAU}, 5")
    a(f"s_lshl_b32 s57, s{G}, 1")
    a("s_add_u32 s56, s56, s57")
    a(f"s_add_u32 s56, s56, s{HH}")
    a("s_lshl_b32 s52, s56, 10")
    a(f"s_add_u32 s56, s52, {WS_Q:#x}")
    a(f"buffer_load_dwordx4 v[{QF}:{QF+3}], v{VT0}, s[{SWS}:{SWS+3}], s56 offen")
    a(f"s_lshl_b32 s62, s{G}, 18")
    if WS_KV: a(f"s_add_u32 s62, s62, {WS_KV:#x}")
    a(f"s_mov_b32 s61, s{J}")
    a("s_mov_b32 s63, 0")
    def issue_chunk():
        a("s_lshl_b32 s56, s61, 14")
        a("s_add_u32 s56, s56, s62")
        a("s_add_u32 m0, s63, s60")
        a(f"buffer_load_dwordx4 v{VDMA}, s[{SWS}:{SWS+3}], s56 offen lds")
        a(f"buffer_load_dwordx4 v{VDMA}, s[{SWS}:{SWS+3}], s56 offen offset:1024 lds")
        a("s_add_u32 s61, s61, 1")
        a("s_and_b32 s61, s61, 15")
        a("s_add_u32 s63, s63, 16384")
        a("s_and_b32 s63, s63, 0x1ffff")
    Li = a.newlabel("K2_pre")
    a("s_mov_b32 s64, 0")
    a.label(Li)
    issue_chunk()
    a("s_add_u32 s64, s64, 1")
    a("s_cmp_lt_u32 s64, 7")
    a(f"s_cbranch_scc1 {Li}")
    st("issued")
    a(f"s_lshl_b32 s56, s{HH}, 13")
    a(f"v_add_u32 v{VKB}, s56, v{VT0}")
    a(f"v_and_b32 v{VT1}, 15, v{VLANE}")
    a(f"v_lshrrev_b32 v1, 5, v{VLANE}")
    a(f"v_lshl_add_u32 v{VT1}, v1, 4, v{VT1}")
    a(f"v_lshlrev_b32 v{VT1}, 4, v{VT1}")
    a(f"v_add_u32 v{VVB}, s56, v{VT1}")
    a(f"v_mov_b32 v{VK}, v{VKB}")
    a(f"v_mov_b32 v{VV}, v{VVB}")
    a(f"v_add_u32 v{VKN}, 16384, v{VKB}")
    a(f"v_add_u32 v{VVN}, 16384, v{VVB}")
    a("s_mov_b32 s70, 0xffff")
    a("s_mov_b32 s71, 0xffff")
    a(f"v_and_b32 v1, 31, v{VLANE}")
    a("v_cmp_eq_u32 vcc, 16, v1")
    a("v_mov_b32 v2, 0x3f803f80")
    for s_ in (76, 77, 78, 79, 80, 81, 82, 83, 84, 85, 86, 87, 88, 89, 90, 91):
        a(f"v_cndmask_b32 v{s_}, 0, v2, vcc")
    for r in range(4): a(f"v_mov_b32 v{P1+r}, 0")
    for r in range(16): a(f"v_mov_b32 v{OA+r}, 0")
    a("s_waitcnt vmcnt(10)")
    a("s_barrier")
    st("bar0")
    issue_chunk()
    a(f"ds_read_b128 v[{KF[0]}:{KF[0]+3}], v{VK}")
    a(f"ds_read_b128 v[{KF[1]}:{KF[1]+3}], v{VK} offset:2048")
    a("s_mov_b64 exec, s[70:71]")
    a(f"ds_read_b128 v[{VF[0][0]}:{VF[0][0]+3}], v{VV} offset:1024")
    a(f"ds_read_b128 v[{VF[0][1]}:{VF[0][1]+3}], v{VV} offset:1536")
    a("s_mov_b64 exec, -1")
    a("s_waitcnt lgkmcnt(0)")
    a(f"v_mfma_f32_32x32x16_bf16 v[{SA}:{SA+15}], v[{KF[0]}:{KF[0]+3}], v[{QF}:{QF+3}], 0")
    a(f"v_max3_f32 v1, v{SA}, v{SA+1}, v{SA+2}") if False else None
    a(f"v_max_f32 v{VT0}, v{SA}, v{SA+1}")
    for r in range(2, 16, 2): a(f"v_max3_f32 v{VT0}, v{VT0}, v{SA+r}, v{SA+r+1}")
    a(f"v_mov_b32 v{VT1}, v{VT0}")
    a(f"v_permlane32_swap_b32 v{VT0}, v{VT1}")
    a(f"v_max_f32 v{VT0}, v{VT0}, v{VT1}")
    for r in range(16): a(f"v_sub_f32 v{NM+r}, 0, v{VT0}")
    a(f"v_mfma_f32_32x32x16_bf16 v[{SA}:{SA+15}], v[{KF[0]}:{KF[0]+3}], v[{QF}:{QF+3}], v[{NM}:{NM+15}]")
    a("s_mov_b32 s64, 0")
    a("s_mov_b32 s65, 16384")
    Lloop = a.newlabel("K2_loop"); Lnb = a.newlabel("K2_nobar")
    a.label(Lloop)
    for t in range(4): attn_tile(a, t)
    a("s_add_u32 s64, s64, 1")
    a(f"v_mov_b32 v{VK}, v{VKN}")
    a(f"v_mov_b32 v{VV}, v{VVN}")
    a("s_add_u32 s65, s65, 16384")
    a("s_and_b32 s65, s65, 0x1ffff")
    a(f"v_add_u32 v{VKN}, s65, v{VKB}")
    a(f"v_add_u32 v{VVN}, s65, v{VVB}")
    a("s_cmp_ge_u32 s64, 16")
    Lend = a.newlabel("K2_end")
    a(f"s_cbranch_scc1 {Lend}")
    Lw0 = a.newlabel("K2_w0"); Lw1 = a.newlabel("K2_w1")
    a("s_cmp_ge_u32 s64, 10")
    a(f"s_cbranch_scc1 {Lw0}")
    a("s_waitcnt vmcnt(10)")
    a(f"s_branch {Lw1}")
    a.label(Lw0)
    a("s_waitcnt vmcnt(0)")
    a.label(Lw1)
    a("s_barrier")
    a("s_cmp_gt_u32 s64, 8")
    a(f"s_cbranch_scc1 {Lloop}")
    issue_chunk()
    a(f"s_branch {Lloop}")
    a.label(Lend)
    st("loopend")
    a("s_waitcnt lgkmcnt(0)")
    a(f"v_mfma_f32_32x32x16_bf16 v[{OA}:{OA+15}], v[{VF[1][1]}:{VF[1][1]+3}], v[{P1}:{P1+3}], v[{OA}:{OA+15}]")
    a(f"v_mov_b32 v{VT0}, v{OA+8}")
    a(f"v_mov_b32 v{VT1}, v{OA+8}")
    a(f"v_permlane32_swap_b32 v{VT0}, v{VT1}")
    a(f"v_rcp_f32 v{VT0}, v{VT0}")
    for r in range(8): a(f"v_mul_f32 v{OA+r}, v{OA+r}, v{VT0}")
    for r in range(4): a(f"v_cvt_pk_bf16_f32 v{P0+r}, v{OA+2*r}, v{OA+2*r+1}")
    a(f"v_lshlrev_b32 v{VT0}, 4, v{VLANE}")
    a(f"s_add_u32 s56, s52, {WS_O:#x}")
    a(f"buffer_store_dwordx4 v[{P0}:{P0+3}], v{VT0}, s[{SWS}:{SWS+3}], s56 offen {sc}")
    st("attn_done")
    if do_fft:
        Lskip = a.newlabel("K2_fftskip")
        a(f"s_cmp_ge_u32 s{W}, 4")
        a(f"s_cbranch_scc1 {Lskip}")
        gen_fft(a, G, J, W, SWS, sc)
        a.label(Lskip)
    st("pre_final")
    a("s_waitcnt vmcnt(0)")
    st("end"); st("real1", real=True)
    st.dump(SWS, W, region=1)
    gen_k2.names = st.names
    a.label(L_done)
    a("s_endpgm")
    emit_table(a, "fft_tbl")
    return 200

def gen_fft(a, G, J, W, SWS, sc):
    E, T, SG, STB = 46, 47, 48, 32
    VL16 = 107
    a(f"s_lshl_b32 s{E}, s{G}, 4")
    a(f"s_add_u32 s{E}, s{E}, s{J}")
    a(f"s_and_b32 s{T}, s{W}, 1")
    a(f"s_lshr_b32 s{SG}, s{W}, 1")
    Lpc = a.newlabel("pc")
    a("s_getpc_b64 s[36:37]")
    a.label(Lpc)
    a(f"s_add_u32 s36, s36, fft_tbl-{Lpc}")
    a("s_addc_u32 s37, s37, 0")
    srd(a, STB, 36, 37, TBL_SIZE)
    a(f"v_lshlrev_b32 v{VL16}, 4, v106")
    a(f"s_lshl_b32 s56, s{E}, 13")
    a(f"s_lshl_b32 s57, s{T}, 10")
    a("s_add_u32 s56, s56, s57")
    a(f"s_add_u32 s56, s56, {WS_Z:#x}")
    a(f"s_cmp_eq_u32 s{E}, 0")
    a(f"s_cselect_b32 s58, s{SG}, 0")
    a("s_lshl_b32 s58, s58, 12")
    a("s_add_u32 s58, s58, s56")
    a("s_add_u32 s59, s56, 4096")
    ZA, ZB, D32, D64, TW = 112, 120, 128, 144, 0
    TW = 176 - 0
    a(f"buffer_load_dwordx4 v[{ZA}:{ZA+3}], v{VL16}, s[{SWS}:{SWS+3}], s58 offen")
    a(f"buffer_load_dwordx4 v[{ZA+4}:{ZA+7}], v{VL16}, s[{SWS}:{SWS+3}], s58 offen offset:2048")
    a(f"buffer_load_dwordx4 v[{ZB}:{ZB+3}], v{VL16}, s[{SWS}:{SWS+3}], s59 offen")
    a(f"buffer_load_dwordx4 v[{ZB+4}:{ZB+7}], v{VL16}, s[{SWS}:{SWS+3}], s59 offen offset:2048")
    for q in range(4):
        a(f"buffer_load_dwordx4 v[{D32+4*q}:{D32+4*q+3}], v{VL16}, s[{STB}:{STB+3}], 0 offen offset:{q*1024}")
    a(f"s_lshl_b32 s57, s{T}, 13")
    a(f"s_add_u32 s57, s57, {TBL_TW}")
    a("s_add_u32 s55, s57, 4096")
    for r4 in range(4):
        a(f"buffer_load_dwordx4 v[{64+4*r4}:{64+4*r4+3}], v{VL16}, s[{STB}:{STB+3}], s57 offen offset:{r4*1024}")
    for r4 in range(4):
        a(f"buffer_load_dwordx4 v[{80+4*r4}:{80+4*r4+3}], v{VL16}, s[{STB}:{STB+3}], s55 offen offset:{r4*1024}")
    a(f"s_lshl_b32 s57, s{T}, 12")
    a(f"s_add_u32 s57, s57, {TBL_D64}")
    a("s_add_u32 s55, s57, 8192")
    for q in range(4):
        a(f"buffer_load_dwordx4 v[{D64+4*q}:{D64+4*q+3}], v{VL16}, s[{STB}:{STB+3}], s57 offen offset:{q*1024}")
    for q in range(4):
        a(f"buffer_load_dwordx4 v[{D64+16+4*q}:{D64+16+4*q+3}], v{VL16}, s[{STB}:{STB+3}], s55 offen offset:{q*1024}")
    a("s_mov_b32 s54, 0x3f800000")
    a(f"s_cmp_eq_u32 s{SG}, 1")
    a("s_cselect_b32 s54, 0xbf800000, s54")
    a(f"s_cmp_eq_u32 s{E}, 0")
    a("s_cselect_b32 s54, 0, s54")
    a("s_waitcnt vmcnt(16)")
    M = "v_mfma_f32_32x32x16_bf16"
    cosf = lambda kk: D32 + 8*kk; sinf = lambda kk: D32 + 8*kk + 4
    for (acc, z, f) in ((0, ZA, cosf), (16, ZA, sinf), (32, ZB, cosf), (48, ZB, sinf)):
        a(f"{M} v[{acc}:{acc+15}], v[{z}:{z+3}], v[{f(0)}:{f(0)+3}], 0")
    for (acc, z, f) in ((0, ZA, cosf), (16, ZA, sinf), (32, ZB, cosf), (48, ZB, sinf)):
        a(f"{M} v[{acc}:{acc+15}], v[{z+4}:{z+7}], v[{f(1)}:{f(1)+3}], v[{acc}:{acc+15}]")
    a("s_waitcnt vmcnt(8)")
    for r in range(16):
        a(f"v_fma_f32 v{r}, s54, v{48+r}, v{r}")
    for r in range(16):
        a(f"v_fma_f32 v{32+r}, s54, v{32+r}, -v{16+r}")
    for r in range(16):
        a(f"v_mul_f32 v{16+r}, v{r}, v{64+r}")
        a(f"v_mul_f32 v{48+r}, v{32+r}, v{64+r}")
        a(f"v_fma_f32 v{16+r}, v{32+r}, v{80+r}, v{16+r}")
        a(f"v_fma_f32 v{48+r}, -v{r}, v{80+r}, v{48+r}")
    UR, UI = 96, 104
    UR, UI = 176, 184
    for q in range(8): a(f"v_cvt_pk_bf16_f32 v{UR+q}, v{16+2*q}, v{17+2*q}")
    for q in range(8): a(f"v_cvt_pk_bf16_f32 v{UI+q}, v{48+2*q}, v{49+2*q}")
    a("s_waitcnt vmcnt(0)")
    for T2p in range(2):
        acc = 64 + 16*T2p
        base = D64 + 16*T2p
        first = True
        for kk in range(2):
            for cs, U in ((0, UR), (1, UI)):
                f = base + (kk*2 + cs)*4
                c = "0" if first else f"v[{acc}:{acc+15}]"
                a(f"{M} v[{acc}:{acc+15}], v[{f}:{f+3}], v[{U+4*kk}:{U+4*kk+3}], {c}")
                first = False
    a("s_barrier")
    a(f"s_lshl_b32 s56, s{W}, 12")
    a(f"v_add_u32 v1, s56, v{VL16}") if False else None
    Lt1 = a.newlabel("fft_t1"); Lx = a.newlabel("fft_x")
    a(f"v_add_u32 v112, s56, v{VL16}")
    a(f"s_xor_b32 s57, s56, 4096")
    a(f"v_add_u32 v113, s57, v{VL16}")
    a(f"s_cmp_eq_u32 s{T}, 1")
    a(f"s_cbranch_scc1 {Lt1}")
    for q in range(4): a(f"ds_write_b128 v112, v[{80+4*q}:{80+4*q+3}] offset:{q*1024}")
    a(f"s_branch {Lx}")
    a.label(Lt1)
    for q in range(4): a(f"ds_write_b128 v112, v[{64+4*q}:{64+4*q+3}] offset:{q*1024}")
    for r in range(16): a(f"v_mov_b32 v{64+r}, v{80+r}")
    a.label(Lx)
    a("s_waitcnt lgkmcnt(0)")
    a("s_barrier")
    for q in range(4): a(f"ds_read_b128 v[{80+4*q}:{80+4*q+3}], v113 offset:{q*1024}")
    a("s_waitcnt lgkmcnt(0)")
    for r in range(16): a(f"v_add_f32 v{64+r}, v{64+r}, v{80+r}")
    for q in range(8): a(f"v_cvt_pk_bf16_f32 v{80+q}, v{64+2*q}, v{65+2*q}")
    a(f"s_sub_u32 s56, 512, s{E}")
    a(f"s_cmp_eq_u32 s{E}, 0")
    a("s_cselect_b32 s56, 256, s56")
    a(f"s_cmp_eq_u32 s{SG}, 0")
    a(f"s_cselect_b32 s56, s{E}, s56")
    a("s_lshl_b32 s56, s56, 12")
    a(f"s_lshl_b32 s57, s{T}, 11")
    a("s_add_u32 s56, s56, s57")
    a(f"s_add_u32 s56, s56, {WS_Y:#x}")
    a("v_and_b32 v1, 31, v106")
    a("v_lshlrev_b32 v1, 6, v1")
    a("v_lshrrev_b32 v2, 5, v106")
    a("v_lshl_add_u32 v1, v2, 5, v1")
    a(f"buffer_store_dwordx4 v[80:83], v1, s[{SWS}:{SWS+3}], s56 offen {sc}")
    a(f"buffer_store_dwordx4 v[84:87], v1, s[{SWS}:{SWS+3}], s56 offen offset:16 {sc}")
```

```python
from asmlib import *
from common import *

def gen_k3(a, name="k3_kernel", stamps=False):
    kernel_header(a, name)
    L_done = a.newlabel("K3_done")
    st = Stamps(a, stamps)
    a("s_cmp_ge_u32 s2, 256")
    a(f"s_cbranch_scc1 {L_done}")
    st("real0", real=True); st("t0")
    a("s_load_dwordx2 s[18:19], s[0:1], 88")
    a("s_load_dwordx2 s[16:17], s[0:1], 72")
    W, TL, CT, KH, TAU, CTG = 42, 43, 44, 45, 46, 47
    a("s_and_b32 s50, s2, 7")
    a("s_lshr_b32 s51, s2, 3")
    a("s_and_b32 s52, s51, 7")
    a("s_lshr_b32 s51, s51, 3")
    a("s_lshl_b32 s50, s50, 2")
    a("s_add_u32 s50, s50, s51")
    a("v_lshrrev_b32 v1, 6, v0")
    a("v_and_b32 v2, 63, v0")
    a(f"v_readfirstlane_b32 s{W}, v1")
    a(f"s_and_b32 s{TL}, s{W}, 1")
    a(f"s_lshr_b32 s{CT}, s{W}, 1")
    a(f"s_and_b32 s{CT}, s{CT}, 1")
    a(f"s_lshr_b32 s{KH}, s{W}, 2")
    a(f"s_lshl_b32 s{TAU}, s50, 1")
    a(f"s_add_u32 s{TAU}, s{TAU}, s{TL}")
    a(f"s_lshl_b32 s{CTG}, s52, 1")
    a(f"s_add_u32 s{CTG}, s{CTG}, s{CT}")
    a("v_and_b32 v3, 31, v2")
    a("v_lshrrev_b32 v4, 2, v3")
    a("v_and_b32 v4, 1, v4")
    a("v_lshlrev_b32 v4, 4, v4")
    a("v_lshrrev_b32 v5, 3, v3")
    a("v_lshl_add_u32 v4, v5, 2, v4")
    a("v_and_b32 v5, 3, v3")
    a("v_add_u32 v4, v4, v5")
    a("v_and_b32 v5, 32, v2")
    a("v_add_u32 v4, v4, v5")
    a("v_lshlrev_b32 v4, 4, v4")
    a("v_lshlrev_b32 v5, 4, v2")
    a("s_waitcnt lgkmcnt(0)")
    SWS, SOUT = 28, 32
    srd(a, SWS, 18, 19, WS_SIZE)
    srd(a, SOUT, 16, 17, 2048 * 1024)
    a(f"s_lshl_b32 s54, s{KH}, 14")
    a(f"s_lshl_b32 s55, s{TAU}, 15")
    a("s_add_u32 s55, s55, s54")
    a(f"s_add_u32 s55, s55, {WS_O:#x}")
    a(f"s_lshl_b32 s56, s{CTG}, 15")
    a("s_add_u32 s56, s56, s54")
    a(f"s_add_u32 s56, s56, {WS_WOF:#x}")
    OF, WF = 32, 96
    for h in range(16):
        if h % 4 == 0 and h:
            a("s_add_u32 s55, s55, 4096"); a("s_add_u32 s56, s56, 4096")
        a(f"buffer_load_dwordx4 v[{OF+4*h}:{OF+4*h+3}], v4, s[{SWS}:{SWS+3}], s55 offen offset:{(h%4)*1024}")
        a(f"buffer_load_dwordx4 v[{WF+4*h}:{WF+4*h+3}], v5, s[{SWS}:{SWS+3}], s56 offen offset:{(h%4)*1024}")
    a("v_lshlrev_b32 v6, 12, v3")
    a("v_lshrrev_b32 v7, 5, v2")
    a("v_lshl_add_u32 v6, v7, 5, v6")
    a(f"s_lshl_b32 s57, s{CTG}, 17")
    a(f"s_lshl_b32 s58, s{TAU}, 6")
    a("s_add_u32 s57, s57, s58")
    a(f"s_add_u32 s57, s57, {WS_Y:#x}")
    a(f"buffer_load_dwordx4 v[160:163], v6, s[{SWS}:{SWS+3}], s57 offen")
    a(f"buffer_load_dwordx4 v[164:167], v6, s[{SWS}:{SWS+3}], s57 offen offset:16")
    a("v_lshlrev_b32 v8, 6, v7")
    a(f"s_lshl_b32 s58, s{TAU}, 7")
    a(f"s_add_u32 s58, s58, {WS_G:#x}")
    for q in range(4):
        a(f"buffer_load_dwordx4 v[{168+4*q}:{168+4*q+3}], v8, s[{SWS}:{SWS+3}], s58 offen offset:{16*q}")
    st("issued")
    for h in range(16):
        a(f"s_waitcnt vmcnt({6 + 2*(15-h)})")
        c = "0" if h == 0 else "v[16:31]"
        a(f"v_mfma_f32_32x32x16_bf16 v[16:31], v[{OF+4*h}:{OF+4*h+3}], v[{WF+4*h}:{WF+4*h+3}], {c}")
    st("mfma")
    a(f"s_and_b32 s59, s{W}, 3")
    a("s_lshl_b32 s59, s59, 12")
    a("v_add_u32 v9, s59, v5")
    Lk1 = a.newlabel("K3_k1")
    a(f"s_cmp_eq_u32 s{KH}, 0")
    a(f"s_cbranch_scc1 {Lk1}")
    for q in range(4): a(f"ds_write_b128 v9, v[{16+4*q}:{16+4*q+3}] offset:{q*1024}")
    a("s_waitcnt lgkmcnt(0)")
    a("s_barrier")
    a(f"s_branch {L_done}")
    a.label(Lk1)
    a("s_barrier")
    for q in range(4): a(f"ds_read_b128 v[{32+4*q}:{32+4*q+3}], v9 offset:{q*1024}")
    a("s_waitcnt vmcnt(0) lgkmcnt(0)")
    for r in range(16): a(f"v_add_f32 v{16+r}, v{16+r}, v{32+r}")
    for q in range(8):
        a(f"v_lshlrev_b32 v{48+2*q}, 16, v{160+q}")
        a(f"v_and_b32 v{49+2*q}, 0xffff0000, v{160+q}")
    for r in range(16):
        a(f"v_sub_f32 v{48+r}, v{48+r}, v{16+r}")
        a(f"v_fma_f32 v{16+r}, v{168+r}, v{48+r}, v{16+r}")
    for q in range(8): a(f"v_cvt_pk_bf16_f32 v{48+q}, v{16+2*q}, v{17+2*q}")
    a("v_lshlrev_b32 v10, 20, v7")
    a("v_lshl_add_u32 v10, v3, 1, v10")
    a(f"s_lshl_b32 s57, s{TAU}, 10")
    a(f"s_lshl_b32 s58, s{CTG}, 6")
    a("s_add_u32 s57, s57, s58")
    for r in range(16):
        op = "buffer_store_short" if r % 2 == 0 else "buffer_store_short_d16_hi"
        a(f"{op} v{48 + r//2}, v10, s[{SOUT}:{SOUT+3}], s57 offen")
        if r < 15: a("s_add_u32 s57, s57, 0x10000")
    st("pre_final")
    a("s_waitcnt vmcnt(0)")
    st("end"); st("real1", real=True)
    st.dump(SWS, W, region=2)
    gen_k3.names = st.names
    a.label(L_done)
    a("s_endpgm")
    return 184
```

```python
import numpy as np, struct
def bf16_bits(x):
    u = np.asarray(x, dtype=np.float32).view(np.uint32)
    r = (u + 0x7FFF + ((u >> 16) & 1)) >> 16
    return r.astype(np.uint16)
lane = np.arange(64); l32 = lane % 32; h2 = lane // 32; j8 = np.arange(8)
def fft_tables():
    out = b""
    for kk in range(2):
        for cs in range(2):
            i = 16*kk + 8*(j8[None,:]//4) + 4*h2[:,None] + j8[None,:]%4
            ang = 2*np.pi*((l32[:,None]*i) % 32)/32
            v = np.cos(ang) if cs == 0 else np.sin(ang)
            out += bf16_bits(v).tobytes()
    for T2p in range(2):
        for T in range(2):
            for kk in range(2):
                for cs in range(2):
                    m = l32
                    t2 = 2*(16*((m//4)%2) + 4*(m//8) + m%4) + T2p
                    tau = 32*T + 16*kk + 8*(j8[None,:]//4) + 4*h2[:,None] + j8[None,:]%4
                    ang = 2*np.pi*((t2[:,None]*tau) % 64)/64
                    v = np.cos(ang) if cs == 0 else np.sin(ang)
                    out += bf16_bits(v).tobytes()
    for T in range(2):
        for cs in range(2):
            for r4 in range(4):
                rr = np.arange(4)
                tau = 32*T + 8*r4 + 4*h2[:,None] + rr[None,:]
                ang = 2*np.pi*((l32[:,None]*tau) % 2048)/2048
                v = np.cos(ang) if cs == 0 else np.sin(ang)
                out += v.astype(np.float32).tobytes()
    return out
TBL_D32 = 0; TBL_D64 = 4096; TBL_TW = 4096 + 16384; TBL_SIZE = 4096 + 16384 + 16384
def emit_table(a, label):
    b = fft_tables(); assert len(b) == TBL_SIZE
    w = np.frombuffer(b, dtype=np.uint32)
    a.raw(".p2align 8")
    a.raw(f".type {label},@object")
    a.raw(f"{label}:")
    for i in range(0, len(w), 8):
        a.raw(".long " + ",".join(f"{x:#x}" for x in w[i:i+8]))
    a.raw(f".size {label}, {TBL_SIZE}")
```

```python
import sys
from asmlib import *
from common import *
import k1, k2, k3
def build(kernels, path):
    a = Asm()
    descs = []
    for name, fn, grid, block, lds in kernels:
        v = fn(a, name)
        descs.append(kernel_desc(name, v))
    n = fix_hazards(a)
    hdr = open("cdna_kernels/" + NAME + ".s.ref").read().split("; Override")[0]
    out = hdr
    for name, fn, grid, block, lds in kernels:
        out += f"; @launch kernel={name} grid=({grid},1,1) block=({block},1,1) lds={lds}\n"
    out += '.amdgcn_target "amdgcn-amd-amdhsa--gfx950"\n'
    out += a.text()
    out += "".join(descs)
    open(path, "w").write(out)
    print("wrote", path, "hazard nops inserted:", n, "bytes", len(out))
if __name__ == "__main__":
    K=[("k1_kernel", k1.gen_k1, 256, 512, 131072), ("k2_kernel", k2.gen_k2, 256, 512, 131072), ("k3_kernel", k3.gen_k3, 256, 512, 16384)]
    build(K, "mk.s")
    KS=[("k1_kernel", lambda a,n: k1.gen_k1(a,n,stamps=True), 256, 512, 131072), ("k2_kernel", lambda a,n: k2.gen_k2(a,n,stamps=True), 256, 512, 131072), ("k3_kernel", lambda a,n: k3.gen_k3(a,n,stamps=True), 256, 512, 16384)]
    build(KS, "mkst.s")
    print(",".join(k1.gen_k1.names)); print(",".join(k2.gen_k2.names)); print(",".join(k3.gen_k3.names))
```

```python
import sys
from asmlib import *
from common import *
import k1, k2, k3
def build(kernels, path):
    a = Asm()
    descs = []
    for name, fn, grid, block, lds in kernels:
        v = fn(a, name)
        descs.append(kernel_desc(name, v))
    n = fix_hazards(a)
    hdr = open("cdna_kernels/" + NAME + ".s.ref").read().split("; Override")[0]
    out = hdr
    for name, fn, grid, block, lds in kernels:
        out += f"; @launch kernel={name} grid=({grid},1,1) block=({block},1,1) lds={lds}\n"
    out += '.amdgcn_target "amdgcn-amd-amdhsa--gfx950"\n'
    out += a.text()
    out += "".join(descs)
    open(path, "w").write(out)
    print("wrote", path, "hazard nops inserted:", n, "bytes", len(out))
if __name__ == "__main__":
    K=[("k1_kernel", k1.gen_k1, 256, 512, 131072), ("k2_kernel", k2.gen_k2, 256, 512, 131072), ("k3_kernel", k3.gen_k3, 256, 512, 16384)]
    build(K, "mk.s")
    KS=[("k1_kernel", lambda a,n: k1.gen_k1(a,n,stamps=True), 256, 512, 131072), ("k2_kernel", lambda a,n: k2.gen_k2(a,n,stamps=True), 256, 512, 131072), ("k3_kernel", lambda a,n: k3.gen_k3(a,n,stamps=True), 256, 512, 16384)]
    build(KS, "mkst.s")
    print(",".join(k1.gen_k1.names)); print(",".join(k2.gen_k2.names)); print(",".join(k3.gen_k3.names))

    import sys
    for nm, fl in (("A",{}),("B",{"noexec":1}),("C",{"nobar":1}),("D",{"nods":1,"noexec":1}),("E",{"nods":1,"noexec":1,"nobar":1}),("F",{"nods":1,"noexec":1,"nobar":1,"nodma":1}),("G",{"nodma":1}),("H",{"nodma":1,"noexec":1})):
        k2.X_.clear(); k2.X_.update(fl)
        KS=[("k1_kernel", k1.gen_k1, 256, 512, 131072), ("k2_kernel", lambda a,n: k2.gen_k2(a,n,stamps=True), 256, 512, 131072)]
        build(KS, f"x{nm}.s")
```

```python
from asmlib import *
from common import *
from tables import *

M32 = "v_mfma_f32_32x32x16_bf16"
SX, SB, SWS, SWO, SGW = 20, 24, 28, 32, 36
STB, SOUT = 32, 36
G, J, W, TL, HH, TAG, TAU = 40, 41, 42, 43, 44, 45, 51
FL_EPOCH = WS_FLAG
FL1 = WS_FLAG + 4096
FL2 = WS_FLAG + 8192
SPIN_MAX = 1 << 18
LDS_CONST = 131072
LDS_FX = 131072 + 8192 + 1024
SA, SBr, NM, OA = 0, 16, 32, 48
QF = 64; KF = [68, 72]; VF = [[76, 80], [84, 88]]; P0 = 92; P1 = 96
VK, VKN, VV, VVN, VKB, VVB, VLANE, VT0, VT1, VDMA, VMSK = 100, 101, 102, 103, 104, 105, 106, 107, 108, 109, 110
TT = 112
X_ = {}

def stamp_noop(*a, **k): pass

def phase1(a, st, sc):
    a("v_lshrrev_b32 v4, 4, v2")
    a("v_and_b32 v5, 7, v2")
    a("v_xor_b32 v6, v4, v5")
    a("v_xor_b32 v7, 4, v6")
    a("v_lshrrev_b32 v8, 3, v2")
    a(f"s_and_b32 s56, s{W}, 1")
    a("s_lshl_b32 s56, s56, 4")
    a(f"s_lshr_b32 s57, s{W}, 1")
    a(f"s_lshl_b32 s58, s{J}, 2")
    a("s_add_u32 s57, s57, s58")
    a("s_lshl_b32 s58, s56, 6")
    a("s_add_u32 s57, s57, s58")
    a("s_lshl_b32 s57, s57, 10")
    a("v_lshlrev_b32 v9, 16, v8")
    a("v_add_u32 v9, s57, v9")
    a("v_lshl_add_u32 v92, v6, 4, v9")
    a("v_lshl_add_u32 v93, v7, 4, v9")
    a(f"v_add_u32 v93, {8*64*1024 - 1024:#x}, v93")
    L_F = a.newlabel("P1_F"); L_Bdone = a.newlabel("P1_Bd")
    a(f"s_cmp_ge_u32 s{W}, 6")
    a(f"s_cbranch_scc1 {L_F}")
    for b in range(2):
        a(f"s_lshl_b32 s56, s{W}, 3")
        a(f"s_add_u32 s56, s56, {4*b}")
        a("v_add_u32 v10, s56, v4")
        a("v_mul_u32_u24 v11, 43, v10")
        a("v_lshrrev_b32 v11, 7, v11")
        a("v_mul_u32_u24 v12, 3, v11")
        a("v_sub_u32 v12, v10, v12")
        a("v_and_b32 v13, 15, v2")
        a("v_lshrrev_b32 v13, 2, v13")
        a("v_lshl_add_u32 v13, v11, 2, v13")
        a("v_mul_u32_u24 v13, 0xc00, v13")
        a("v_lshl_add_u32 v13, v12, 10, v13")
        a("v_and_b32 v14, 3, v2")
        a("v_and_b32 v15, 1, v12")
        a("v_lshlrev_b32 v15, 1, v15")
        a("v_xor_b32 v14, v14, v15")
        a("v_lshl_add_u32 v13, v14, 4, v13")
        a(f"s_lshl_b32 s56, s{G}, 6")
        if b == 1: a("s_sub_u32 s56, s56, 1024")
        a(f"v_add_u32 v{94+b}, s56, v13")
    a(f"s_branch {L_Bdone}")
    a.label(L_F)
    a(f"s_lshl_b32 s56, s{G}, 14")
    a("v_lshlrev_b32 v9, 10, v8")
    a("v_add_u32 v9, s56, v9")
    a("v_lshl_add_u32 v94, v6, 4, v9")
    a("v_lshl_add_u32 v95, v7, 4, v9")
    a(f"v_add_u32 v95, {8*1024 - 1024:#x}, v95")
    a.label(L_Bdone)
    a(f"s_lshl_b32 s60, s{W}, 11")
    a("s_mov_b32 s61, 0")
    a("s_mov_b32 s62, 0")
    a("s_waitcnt lgkmcnt(0)")
    srd(a, SX, 4, 5, 2048 * 1024)
    a(f"s_cmp_eq_u32 s{W}, 6")
    a("s_cselect_b32 s46, s8, s12")
    a("s_cselect_b32 s47, s9, s13")
    a(f"s_cmp_eq_u32 s{W}, 7")
    a("s_cselect_b32 s46, s10, s46")
    a("s_cselect_b32 s47, s11, s47")
    a(f"s_cmp_ge_u32 s{W}, 6")
    a(f"s_mov_b32 s48, {512*3072:#x}")
    a(f"s_mov_b32 s49, {64*3072:#x}")
    a(f"s_cselect_b32 s48, {512*1024:#x}, s48")
    a(f"s_cselect_b32 s49, 128, s49")
    a(f"s_mov_b32 s{SB}, s46")
    a(f"s_and_b32 s{SB+1}, s47, 0xffff")
    a(f"s_mov_b32 s{SB+2}, s48")
    a(f"s_mov_b32 s{SB+3}, 0x20000")
    NST = 5
    def issue_chunk(c):
        stg = (c % NST) * 32768
        a(f"s_add_u32 m0, s60, {stg}")
        a(f"buffer_load_dwordx4 v92, s[{SX}:{SX+3}], s61 offen lds")
        a(f"buffer_load_dwordx4 v93, s[{SX}:{SX+3}], s61 offen offset:1024 lds")
        a(f"s_add_u32 m0, s60, {stg + 16384}")
        a(f"buffer_load_dwordx4 v94, s[{SB}:{SB+3}], s62 offen lds")
        a(f"buffer_load_dwordx4 v95, s[{SB}:{SB+3}], s62 offen offset:1024 lds")
        a("s_add_u32 s61, s61, 128")
        a("s_add_u32 s62, s62, s49")
    for c in range(NST):
        issue_chunk(c)
        if c < NST - 1 and X_.get("issuebar", 1): a("s_barrier")
    st("issued")
    a(f"s_add_u32 s56, s18, {FL_EPOCH:#x}")
    a("s_addc_u32 s57, s19, 0")
    a(f"s_load_dword s{TAG}, s[56:57], 0")
    srd(a, SWS, 18, 19, WS_SIZE)
    srd(a, SWO, 14, 15, 512 * 1024)
    srd(a, SGW, 16, 17, 1024)
    a(f"s_lshl_b32 s50, s{G}, 1")
    a(f"s_add_u32 s50, s50, s{HH}")
    a(f"s_lshl_b32 s52, s50, 6")
    a(f"s_add_u32 s52, s52, s{TAU}")
    a(f"s_lshl_b32 s52, s52, 10")
    a("v_lshlrev_b32 v3, 4, v2")
    a(f"buffer_load_dwordx4 v[96:99], v3, s[{SX}:{SX+3}], s52 offen")
    a(f"buffer_load_dwordx4 v[100:103], v3, s[{SGW}:{SGW+3}], 0 offen")
    a(f"s_and_b32 s53, s{W}, 1")
    a(f"s_lshl_b32 s54, s2, 1")
    a("s_add_u32 s53, s53, s54")
    a("s_lshr_b32 s54, s53, 5")
    a("s_and_b32 s55, s53, 31")
    a("s_lshl_b32 s55, s55, 14")
    a("s_lshl_b32 s54, s54, 6")
    a("s_add_u32 s55, s55, s54")
    a(f"s_lshr_b32 s54, s{W}, 1")
    a("s_lshr_b32 s56, s54, 1")
    a("s_lshl_b32 s56, s56, 13")
    a("s_add_u32 s55, s55, s56")
    a("s_and_b32 s56, s54, 1")
    a("s_lshl_b32 s56, s56, 11")
    a("s_add_u32 s55, s55, s56")
    a("v_lshrrev_b32 v4, 5, v2")
    a("v_lshlrev_b32 v4, 12, v4")
    a("v_and_b32 v5, 31, v2")
    a("v_lshl_add_u32 v4, v5, 1, v4")
    a(f"buffer_load_ushort v104, v4, s[{SWO}:{SWO+3}], s55 offen")
    a(f"buffer_load_ushort v105, v4, s[{SWO}:{SWO+3}], s55 offen offset:1024")
    a(f"s_lshl_b32 s56, s{W}, 21")
    a("v_mov_b32 v5, 0")
    a(f"buffer_load_dword v106, v5, s[{SWS}:{SWS+3}], s56 offen")
    srd(a, 68, 6, 7, 2048 * 1024)
    a(f"s_lshl_b32 s56, s{W}, 18")
    a(f"buffer_load_dword v107, v5, s[68:71], s56 offen")
    XA, FA, WAa, WBa = 72, 84, 108, 111
    XA = [72, 76, 80]; FA = [84, 88, 116]; WAa = [108, 109, 110]; WBa = [111, 112, 113]
    a("v_and_b32 v4, 31, v2")
    a("v_lshrrev_b32 v5, 5, v2")
    a("v_lshrrev_b32 v6, 1, v4")
    a("v_and_b32 v6, 7, v6")
    a("v_lshlrev_b32 v7, 7, v4")
    a(f"s_lshl_b32 s56, s{TL}, 12")
    for ks in range(4):
        a(f"v_add_u32 v8, {2*ks}, v5")
        a("v_xor_b32 v8, v8, v6")
        a("v_lshl_add_u32 v8, v8, 4, v7")
        a(f"v_add_u32 v{XA[0]+ks}, s56, v8")
        a(f"v_add_u32 v{XA[1]+ks}, 0x10000, v{XA[0]+ks}")
        a(f"v_add_u32 v{XA[2]+ks}, 0x20000, v{XA[0]+ks}")
        a(f"v_add_u32 v{FA[0]+ks}, {28672}, v8")
        a(f"v_add_u32 v{FA[1]+ks}, {28672+65536}, v8")
        a(f"v_add_u32 v{FA[2]+ks}, {28672+131072}, v8")
    a("v_lshrrev_b32 v8, 4, v2")
    a("v_and_b32 v8, 1, v8")
    a("v_and_b32 v9, 15, v2")
    a("v_lshrrev_b32 v10, 2, v9")
    a("v_and_b32 v9, 3, v9")
    a("v_lshlrev_b32 v10, 6, v10")
    a("v_lshl_add_u32 v10, v9, 3, v10")
    a("v_mul_u32_u24 v11, 1536, v5")
    a("v_add_u32 v10, v10, v11")
    a(f"v_add_u32 v10, 16384, v10")
    a(f"v_xor_b32 v11, s{HH}, v8")
    a("v_lshlrev_b32 v11, 5, v11")
    a("v_lshl_add_u32 v11, v8, 8, v11")
    a(f"v_add_u32 v{WAa[0]}, v10, v11")
    a(f"v_add_u32 v{WAa[1]}, 0x10000, v{WAa[0]}")
    a(f"v_add_u32 v{WAa[2]}, 0x20000, v{WAa[0]}")
    a("v_lshlrev_b32 v11, 5, v8")
    a(f"v_add_u32 v{WBa[0]}, v10, v11")
    a(f"v_add_u32 v{WBa[0]}, 512, v{WBa[0]}")
    a(f"v_add_u32 v{WBa[1]}, 0x10000, v{WBa[0]}")
    a(f"v_add_u32 v{WBa[2]}, 0x20000, v{WBa[0]}")
    for r in range(16, 48): a(f"v_mov_b32 v{r}, 0")
    a("v_mov_b32 v8, 0xbf803f80")
    for r in (9, 10, 11): a(f"v_mov_b32 v{r}, v8")
    a(f"v_lshlrev_b32 v12, 4, v2")
    a(f"v_add_u32 v12, {28672 + 16*128}, v12")
    a(f"s_lshl_b32 s63, s{G}, 3")
    a(f"s_or_b32 s63, s63, s{W}")
    a("s_mov_b64 s[64:65], 0xff")
    WAITS = [22, 18, 18, 18, 18, 8, 4, 0]
    def main_loop(role):
        XF = [48, 52]; WA = [56, 60]; WB = [64, 68]
        def reads(c, ks):
            stg = c % NST
            s_ = stg // 2
            off = (stg % 2) * 32768
            bi = ks % 2
            a(f"ds_read_b128 v[{XF[bi]}:{XF[bi]+3}], v{XA[s_]+ks} offset:{off}")
            a(f"ds_read_b64_tr_b16 v[{WA[bi]}:{WA[bi]+1}], v{WAa[s_]} offset:{off + ks*3072}")
            a(f"ds_read_b64_tr_b16 v[{WA[bi]+2}:{WA[bi]+3}], v{WAa[s_]} offset:{off + ks*3072 + 768}")
            if role == 0:
                a(f"ds_read_b64_tr_b16 v[{WB[bi]}:{WB[bi]+1}], v{WBa[s_]} offset:{off + ks*3072}")
                a(f"ds_read_b64_tr_b16 v[{WB[bi]+2}:{WB[bi]+3}], v{WBa[s_]} offset:{off + ks*3072 + 768}")
                return 5
            else:
                a(f"ds_read_b128 v[{WB[bi]}:{WB[bi]+3}], v{FA[s_]+ks} offset:{off}")
                return 4
        for c in range(8):
            a(f"s_waitcnt vmcnt({WAITS[c]})")
            if role == 1:
                Ls = a.newlabel("P1_nofix")
                a("s_cmp_lg_u32 s63, 7")
                a(f"s_cbranch_scc1 {Ls}")
                a("s_mov_b64 exec, s[64:65]")
                stg = (c % NST) * 32768
                a(f"v_add_u32 v13, {stg}, v12")
                a(f"ds_write_b128 v13, v[8:11]")
                a("s_mov_b64 exec, -1")
                a("s_waitcnt lgkmcnt(0)")
                a.label(Ls)
            a("s_barrier")
            if role == 0 and c in (0, 7): st(f"bar{c}")
            if 1 <= c <= 3: issue_chunk(c + 4)
            n = reads(c, 0)
            n = reads(c, 1)
            for ks in range(4):
                bi = ks % 2
                a(f"s_waitcnt lgkmcnt({n if ks < 3 else 0})")
                a(f"{M32} v[16:31], v[{WA[bi]}:{WA[bi]+3}], v[{XF[bi]}:{XF[bi]+3}], v[16:31]")
                a(f"{M32} v[32:47], v[{XF[bi]}:{XF[bi]+3}], v[{WB[bi]}:{WB[bi]+3}], v[32:47]")
                if ks + 2 < 4: reads(c, ks + 2)
    def tileA_epi():
        a(f"s_mov_b32 s56, {f2u(QSCALE):#x}")
        for r in range(8): a(f"v_mul_f32 v{16+r}, s56, v{16+r}")
        for r in range(4): a(f"v_cvt_pk_bf16_f32 v{52+r}, v{24+2*r}, v{25+2*r}")
        for r in range(4): a(f"v_cvt_pk_bf16_f32 v{QF+r}, v{16+2*r}, v{17+2*r}")
        a("v_lshlrev_b32 v3, 4, v2")
        a(f"s_lshl_b32 s58, s{G}, 4")
        a(f"s_add_u32 s58, s58, s{J}")
        a("s_lshl_b32 s58, s58, 14")
        if WS_KV: a(f"s_add_u32 s58, s58, {WS_KV:#x}")
        a(f"s_lshl_b32 s59, s{TL}, 11")
        a("s_add_u32 s58, s58, s59")
        a(f"s_lshl_b32 s57, s{HH}, 13")
        a("s_add_u32 s59, s59, s57")
        a("s_add_u32 s57, s57, s58")
        a(f"buffer_store_dwordx4 v[52:55], v3, s[{SWS}:{SWS+3}], s57 offen {sc}")
    L_r1 = a.newlabel("P1_role1"); L_epi = a.newlabel("P1_epi")
    a(f"s_cmp_eq_u32 s{HH}, 1")
    a(f"s_cbranch_scc1 {L_r1}")
    main_loop(0)
    tileA_epi()
    for r in range(8): a(f"v_cvt_pk_bf16_f32 v{56+r}, v{32+2*r}, v{33+2*r}")
    a("v_and_b32 v4, 15, v2")
    a("v_lshrrev_b32 v5, 5, v2")
    a("v_lshl_add_u32 v4, v5, 4, v4")
    a("v_lshlrev_b32 v4, 4, v4")
    a("v_lshrrev_b32 v5, 4, v2")
    a("v_and_b32 v5, 1, v5")
    a("v_lshl_add_u32 v4, v5, 13, v4")
    a(f"buffer_store_dwordx4 v[56:59], v4, s[{SWS}:{SWS+3}], s58 offen offset:1024 {sc}")
    a(f"buffer_store_dwordx4 v[60:63], v4, s[{SWS}:{SWS+3}], s58 offen offset:1536 {sc}")
    a("s_barrier")
    a(f"s_lshl_b32 s56, s{TL}, 11")
    a("v_add_u32 v4, s56, v4")
    a("ds_write_b128 v4, v[56:59] offset:1024")
    a("ds_write_b128 v4, v[60:63] offset:1536")
    a(f"s_branch {L_epi}")
    a.label(L_r1)
    main_loop(1)
    tileA_epi()
    for r in range(8): a(f"v_cvt_pk_bf16_f32 v{56+r}, v{32+2*r}, v{33+2*r}")
    a("v_and_b32 v4, 15, v2")
    a("v_lshlrev_b32 v4, 13, v4")
    a("v_lshrrev_b32 v5, 4, v2")
    a("v_and_b32 v5, 1, v5")
    a("v_lshl_add_u32 v4, v5, 12, v4")
    a("v_lshrrev_b32 v5, 5, v2")
    a("v_lshl_add_u32 v4, v5, 9, v4")
    a(f"s_lshl_b32 s56, s{G}, 17")
    a(f"s_lshr_b32 s57, s{TAU}, 5")
    a("s_lshl_b32 s57, s57, 10")
    a("s_add_u32 s56, s56, s57")
    a(f"s_and_b32 s57, s{TAU}, 31")
    a("s_lshl_b32 s57, s57, 4")
    a("s_add_u32 s56, s56, s57")
    a(f"s_add_u32 s56, s56, {WS_Z:#x}")
    a(f"buffer_store_dwordx4 v[56:59], v4, s[{SWS}:{SWS+3}], s56 offen {sc}")
    a(f"buffer_store_dwordx4 v[60:63], v4, s[{SWS}:{SWS+3}], s56 offen offset:2048 {sc}")
    a("s_barrier")
    a.label(L_epi)
    a("v_add_u32 v4, s59, v3")
    a("ds_write_b128 v4, v[52:55]")
    a("v_and_b32 v5, 31, v2")
    a("v_cmp_eq_u32 vcc, 0, v5")
    a("v_mov_b32 v6, 0x3f803f80")
    a("v_cndmask_b32 v8, 0, v6, vcc")
    for r in (9, 10, 11): a(f"v_mov_b32 v{r}, v8")
    a(f"s_lshl_b32 s56, s{W}, 10")
    a(f"s_add_u32 s56, s56, {LDS_CONST}")
    a("v_add_u32 v4, s56, v3")
    a("ds_write_b128 v4, v[8:11]")
    a("v_mov_b32 v4, 0")
    for r in range(4): a(f"v_dot2_f32_bf16 v4, v{96+r}, v{100+r}, v4")
    for sh in (1, 2, 4, 8):
        a(f"v_add_f32_dpp v4, v4, v4 row_shr:{sh} row_mask:0xf bank_mask:0xf bound_ctrl:0")
    a("v_add_f32_dpp v4, v4, v4 row_bcast:15 row_mask:0xa bank_mask:0xf")
    a("v_add_f32_dpp v4, v4, v4 row_bcast:31 row_mask:0xc bank_mask:0xf")
    a(f"s_mov_b32 s56, {f2u(-math.log2(math.e)):#x}")
    a("v_mul_f32 v4, s56, v4")
    a("v_exp_f32 v4, v4")
    a("v_add_f32 v4, 1.0, v4")
    a("v_rcp_f32 v4, v4")
    a(f"s_lshl_b32 s56, s{TAU}, 5")
    a("s_add_u32 s56, s56, s50")
    a("s_lshl_b32 s56, s56, 2")
    a(f"s_add_u32 s56, s56, {WS_G:#x}")
    a("v_mov_b32 v5, 0")
    a("s_mov_b32 exec_lo, 0")
    a("s_mov_b32 exec_hi, 0x80000000")
    a(f"buffer_store_dword v4, v5, s[{SWS}:{SWS+3}], s56 offen {sc}")
    a("s_mov_b64 exec, -1")
    a("v_lshl_or_b32 v104, v105, 16, v104")
    a("s_lshl_b32 s56, s53, 10")
    a(f"s_lshr_b32 s57, s{W}, 1")
    a("s_lshl_b32 s57, s57, 2")
    a("s_add_u32 s56, s56, s57")
    a(f"s_add_u32 s56, s56, {WS_WOF:#x}")
    a(f"buffer_store_dword v104, v3, s[{SWS}:{SWS+3}], s56 offen {sc}")

def attn_tile(a, t, prio=None):
    X = SA if t % 2 == 0 else SBr
    Y = SBr if t % 2 == 0 else SA
    Kn = KF[(t + 1) % 2]; Kf = KF[t % 2]
    Vc = VF[t % 2]; Vn = VF[(t + 1) % 2]
    E = lambda i: a(f"v_exp_f32 v{TT+i}, v{X+i}")
    def C(i):
        dst = (P0 + i // 2) if i < 8 else (P1 + (i - 8) // 2)
        a(f"v_cvt_pk_bf16_f32 v{dst}, v{TT+i}, v{TT+i+1}")
    if prio is not None: a(f"s_setprio {prio}")
    a("s_waitcnt lgkmcnt(0)")
    a(f"{M32} v[{Y}:{Y+15}], v[{Kn}:{Kn+3}], v[{QF}:{QF+3}], v[{NM}:{NM+15}]")
    E(0); E(1); C(14); E(2); E(3); C(0); E(4); E(5)
    a(f"{M32} v[{OA}:{OA+15}], v[{Vn[1]}:{Vn[1]+3}], v[{P1}:{P1+3}], v[{OA}:{OA+15}]")
    if t < 3: va, off = VV, (t + 1) * 2048
    else: va, off = VVN, 0
    a(f"ds_read_b128 v[{Vn[0]}:{Vn[0]+3}], v{va} offset:{off + 1024}")
    a(f"ds_read_b128 v[{Vn[1]}:{Vn[1]+3}], v{va} offset:{off + 1536}")
    if t < 2: ka, off = VK, (t + 2) * 2048
    else: ka, off = VKN, (t - 2) * 2048
    a(f"ds_read_b128 v[{Kf}:{Kf+3}], v{ka} offset:{off}")
    C(2); E(6); E(7); C(4); E(8); E(9); C(6); E(10); E(11)
    a(f"{M32} v[{OA}:{OA+15}], v[{Vc[0]}:{Vc[0]+3}], v[{P0}:{P0+3}], v[{OA}:{OA+15}]")
    C(8); E(12); E(13); C(10); E(14); E(15); C(12)

def poll(a, st, flag_off_sgpr, nlanes_mask_lo, nlanes_mask_hi, wide, vtmp=120):
    Lp = a.newlabel("poll"); Lok = a.newlabel("pollok"); Lskip = a.newlabel("pollskip")
    a(f"s_cmp_lg_u32 s{W}, 0")
    a(f"s_cbranch_scc1 {Lskip}")
    a(f"v_lshlrev_b32 v{vtmp}, {4 if wide else 2}, v{VLANE}")
    a(f"s_mov_b32 s66, {nlanes_mask_lo:#x}")
    a(f"s_mov_b32 s67, {nlanes_mask_hi:#x}")
    a("s_mov_b32 s68, 0")
    a("s_mov_b64 exec, s[66:67]")
    a.label(Lp)
    if wide:
        a(f"buffer_load_dwordx4 v[{vtmp+4}:{vtmp+7}], v{vtmp}, s[{SWS}:{SWS+3}], s{flag_off_sgpr} offen sc1")
        a("s_waitcnt vmcnt(0)")
        a(f"v_xor_b32 v{vtmp+4}, s{TAG}, v{vtmp+4}")
        for q in (5, 6, 7):
            a(f"v_xor_b32 v{vtmp+q}, s{TAG}, v{vtmp+q}")
            a(f"v_or_b32 v{vtmp+4}, v{vtmp+4}, v{vtmp+q}")
    else:
        a(f"buffer_load_dword v{vtmp+4}, v{vtmp}, s[{SWS}:{SWS+3}], s{flag_off_sgpr} offen sc1")
        a("s_waitcnt vmcnt(0)")
        a(f"v_xor_b32 v{vtmp+4}, s{TAG}, v{vtmp+4}")
    a(f"v_cmp_ne_u32 vcc, 0, v{vtmp+4}")
    a(f"s_cbranch_vccz {Lok}")
    a("s_add_u32 s68, s68, 1")
    a(f"s_cmp_lt_u32 s68, {SPIN_MAX}")
    a(f"s_cbranch_scc0 {Lok}")
    a(f"s_sleep {X_.get('sleep', 2)}")
    a(f"s_branch {Lp}")
    a.label(Lok)
    a("s_mov_b64 exec, -1")
    a.label(Lskip)
    a("s_barrier")

def publish(a, flag_off_expr_sgpr):
    Ls = a.newlabel("nopub")
    a("s_waitcnt vmcnt(0)")
    a("s_barrier")
    a(f"s_cmp_lg_u32 s{W}, 0")
    a(f"s_cbranch_scc1 {Ls}")
    a(f"v_mov_b32 v120, s{TAG}")
    a("v_mov_b32 v121, 0")
    a("s_mov_b64 exec, 1")
    a(f"buffer_store_dword v120, v121, s[{SWS}:{SWS+3}], s{flag_off_expr_sgpr} offen sc1")
    a("s_mov_b64 exec, -1")
    a.label(Ls)

def phase2(a, st, sc):
    a(f"v_mov_b32 v{VLANE}, v2")
    a(f"s_lshl_b32 s60, s{W}, 11")
    a(f"v_lshlrev_b32 v{VT0}, 4, v{VLANE}")
    a(f"v_add_u32 v{VDMA}, s60, v{VT0}")
    a(f"s_lshl_b32 s56, s{TAU}, 5")
    a(f"s_lshl_b32 s57, s{G}, 1")
    a("s_add_u32 s56, s56, s57")
    a(f"s_add_u32 s56, s56, s{HH}")
    a("s_lshl_b32 s52, s56, 10")
    a(f"s_lshl_b32 s62, s{G}, 18")
    if WS_KV: a(f"s_add_u32 s62, s62, {WS_KV:#x}")
    a(f"s_add_u32 s61, s{J}, 1")
    a("s_and_b32 s61, s61, 15")
    a("s_mov_b32 s63, 16384")
    a(f"s_lshl_b32 s73, s{G}, 7")
    a(f"s_add_u32 s73, s73, {FL1:#x}")
    a(f"s_lshl_b32 s72, s{J}, 2")
    a("s_add_u32 s72, s72, s73")
    a("s_lshl_b32 s74, s2, 2")
    a(f"s_add_u32 s74, s74, {FL2:#x}")
    def issue_chunk():
        a("s_lshl_b32 s56, s61, 14")
        a("s_add_u32 s56, s56, s62")
        a("s_add_u32 m0, s63, s60")
        a(f"buffer_load_dwordx4 v{VDMA}, s[{SWS}:{SWS+3}], s56 offen sc1 lds")
        a(f"buffer_load_dwordx4 v{VDMA}, s[{SWS}:{SWS+3}], s56 offen offset:1024 sc1 lds")
        a("s_add_u32 s61, s61, 1")
        a("s_and_b32 s61, s61, 15")
        a("s_add_u32 s63, s63, 16384")
        a("s_and_b32 s63, s63, 0x1ffff")
    a(f"s_lshl_b32 s56, s{HH}, 13")
    a(f"v_add_u32 v{VKB}, s56, v{VT0}")
    a(f"v_and_b32 v{VT1}, 15, v{VLANE}")
    a(f"v_lshrrev_b32 v1, 5, v{VLANE}")
    a(f"v_lshl_add_u32 v{VT1}, v1, 4, v{VT1}")
    a(f"v_lshlrev_b32 v{VT1}, 4, v{VT1}")
    a(f"v_add_u32 v{VVB}, s56, v{VT1}")
    a(f"v_and_b32 v1, 31, v{VLANE}")
    a("v_mov_b32 v3, 16")
    a("v_cmp_eq_u32 vcc, 16, v1")
    a("v_cndmask_b32 v3, v3, 0, vcc") if False else None
    a("v_cndmask_b32 v3, 16, v4, vcc") if False else None
    a("v_mov_b32 v4, 0")
    a("v_mov_b32 v5, 16")
    a("v_cndmask_b32 v3, v5, v4, vcc")
    a("v_subrev_u32 v4, 20, v1")
    a("v_cmp_gt_u32 vcc, 8, v4")
    a("v_mov_b32 v5, 64")
    a("v_cndmask_b32 v3, v3, v5, vcc")
    a(f"v_add_u32 v3, {LDS_CONST - 1024}, v3")
    a(f"v_and_b32 v4, 16, v{VLANE}")
    a("v_cmp_eq_u32 vcc, 0, v4")
    a(f"v_cndmask_b32 v{VVB}, v3, v{VVB}, vcc")
    a(f"v_cndmask_b32 v{VMSK}, 0, 1, vcc")
    a(f"v_mov_b32 v{VK}, v{VKB}")
    a(f"v_mov_b32 v{VV}, v{VVB}")
    a(f"v_add_u32 v{VKN}, 16384, v{VKB}")
    a("s_mov_b32 s65, 16384")
    a(f"v_mad_u32_u24 v{VVN}, s65, v{VMSK}, v{VVB}")
    for r in range(4): a(f"v_mov_b32 v{P1+r}, 0")
    a(f"v_mov_b32 v{TT+14}, 0"); a(f"v_mov_b32 v{TT+15}, 0")
    for r in range(16): a(f"v_mov_b32 v{OA+r}, 0")
    for r in range(4): a(f"v_mov_b32 v{VF[1][1]+r}, 0")
    a("s_waitcnt lgkmcnt(0)")
    a("s_barrier")
    st("p2start")
    def prime(first):
        a(f"ds_read_b128 v[{KF[0]}:{KF[0]+3}], v{VK}")
        a(f"ds_read_b128 v[{KF[1]}:{KF[1]+3}], v{VK} offset:2048")
        a(f"ds_read_b128 v[{VF[0][0]}:{VF[0][0]+3}], v{VV} offset:1024")
        a(f"ds_read_b128 v[{VF[0][1]}:{VF[0][1]+3}], v{VV} offset:1536")
        a("s_waitcnt lgkmcnt(0)")
        if first:
            a(f"{M32} v[{SA}:{SA+15}], v[{KF[0]}:{KF[0]+3}], v[{QF}:{QF+3}], 0")
            a(f"v_max_f32 v{VT0}, v{SA}, v{SA+1}")
            for r in range(2, 16, 2): a(f"v_max3_f32 v{VT0}, v{VT0}, v{SA+r}, v{SA+r+1}")
            a(f"v_mov_b32 v{VT1}, v{VT0}")
            a(f"v_permlane32_swap_b32 v{VT0}, v{VT1}")
            a(f"v_max_f32 v{VT0}, v{VT0}, v{VT1}")
            for r in range(16): a(f"v_sub_f32 v{NM+r}, 0, v{VT0}")
        a(f"{M32} v[{SA}:{SA+15}], v[{KF[0]}:{KF[0]+3}], v[{QF}:{QF+3}], v[{NM}:{NM+15}]")
        a("s_nop 7"); a("s_nop 3")
    prime(True)
    a("s_mov_b32 s64, 0")
    Lpost = a.newlabel("P2_post"); Lend = a.newlabel("P2_end")
    def loop(ver, Lloop, Lre):
        a.label(Lloop)
        for t in range(4):
            pr = None
            if ver == 1 and X_.get("prio", 1):
                if t == 0: pr = 2
                if t == 3: pr = 0
            if t == 2:
                Ln = a.newlabel("P2_np")
                a("s_cmp_lg_u32 s64, 0")
                a(f"s_cbranch_scc1 {Ln}")
                publish(a, 72)
                a.label(Ln)
            attn_tile(a, t, pr)
        a("s_add_u32 s64, s64, 1")
        a(f"v_mov_b32 v{VK}, v{VKN}")
        a(f"v_mov_b32 v{VV}, v{VVN}")
        a("s_add_u32 s65, s65, 16384")
        a("s_and_b32 s65, s65, 0x1ffff")
        a(f"v_add_u32 v{VKN}, s65, v{VKB}")
        a(f"v_mad_u32_u24 v{VVN}, s65, v{VMSK}, v{VVB}")
        a("s_cmp_eq_u32 s64, 1")
        a(f"s_cbranch_scc1 {Lpost}")
        a("s_cmp_ge_u32 s64, 16")
        a(f"s_cbranch_scc1 {Lend}")
        Lw0 = a.newlabel("P2_w0"); Lw1 = a.newlabel("P2_w1")
        a("s_cmp_ge_u32 s64, 10")
        a(f"s_cbranch_scc1 {Lw0}")
        a("s_waitcnt vmcnt(10)")
        a("s_barrier")
        a("s_cmp_gt_u32 s64, 8")
        a(f"s_cbranch_scc1 {Lloop}")
        issue_chunk()
        a(f"s_branch {Lloop}")
        a.label(Lw0)
        a("s_waitcnt vmcnt(0)")
        a("s_barrier")
        a(f"s_branch {Lloop}")
    LA = a.newlabel("P2_loopA"); LB = a.newlabel("P2_loopB")
    a(f"s_cmp_ge_u32 s{W}, 4")
    a(f"s_cbranch_scc1 {LB}")
    if X_.get("prio", 1): a("s_setprio 1")
    loop(0, LA, None)
    loop(1, LB, None)
    a.label(Lpost)
    st("it0done")
    poll(a, st, 73, 0xffff, 0, False)
    st("flags1")
    for q in range(7): issue_chunk()
    a("s_waitcnt vmcnt(10)")
    a("s_barrier")
    st("kv1")
    issue_chunk()
    prime(False)
    a(f"s_cmp_ge_u32 s{W}, 4")
    a(f"s_cbranch_scc1 {LB}")
    a(f"s_branch {LA}")
    a.label(Lend)
    a("s_setprio 0")
    st("loopend")
    a(f"v_cvt_pk_bf16_f32 v{P1+3}, v{TT+14}, v{TT+15}")
    a("s_waitcnt lgkmcnt(0)")
    a(f"{M32} v[{OA}:{OA+15}], v[{VF[1][1]}:{VF[1][1]+3}], v[{P1}:{P1+3}], v[{OA}:{OA+15}]")
    a(f"v_mov_b32 v{VT0}, v{OA+8}")
    a(f"v_mov_b32 v{VT1}, v{OA+8}")
    a(f"v_permlane32_swap_b32 v{VT0}, v{VT1}")
    a(f"v_rcp_f32 v{VT0}, v{VT0}")
    for r in range(8): a(f"v_mul_f32 v{OA+r}, v{OA+r}, v{VT0}")
    for r in range(4): a(f"v_cvt_pk_bf16_f32 v{P0+r}, v{OA+2*r}, v{OA+2*r+1}")
    a(f"v_lshlrev_b32 v{VT0}, 4, v{VLANE}")
    a(f"s_add_u32 s56, s52, {WS_O:#x}")
    a(f"buffer_store_dwordx4 v[{P0}:{P0+3}], v{VT0}, s[{SWS}:{SWS+3}], s56 offen {sc}")

def fft(a, st, sc):
    E, T, SG = 46, 47, 48
    VL16 = VT0
    a(f"s_lshl_b32 s{E}, s{G}, 4")
    a(f"s_add_u32 s{E}, s{E}, s{J}")
    a(f"s_and_b32 s{T}, s{W}, 1")
    a(f"s_lshr_b32 s{SG}, s{W}, 1")
    Lpc = a.newlabel("pc")
    a("s_getpc_b64 s[58:59]")
    a.label(Lpc)
    a(f"s_add_u32 s58, s58, fft_tbl-{Lpc}")
    a("s_addc_u32 s59, s59, 0")
    srd(a, STB, 58, 59, TBL_SIZE)
    a(f"s_lshl_b32 s56, s{E}, 13")
    a(f"s_lshl_b32 s57, s{T}, 10")
    a("s_add_u32 s56, s56, s57")
    a(f"s_add_u32 s56, s56, {WS_Z:#x}")
    a(f"s_cmp_eq_u32 s{E}, 0")
    a(f"s_cselect_b32 s58, s{SG}, 0")
    a("s_lshl_b32 s58, s58, 12")
    a("s_add_u32 s58, s58, s56")
    a("s_add_u32 s59, s56, 4096")
    ZA, ZB, D32, D64 = 128, 136, 144, 160
    a(f"buffer_load_dwordx4 v[{ZA}:{ZA+3}], v{VL16}, s[{SWS}:{SWS+3}], s58 offen sc1")
    a(f"buffer_load_dwordx4 v[{ZA+4}:{ZA+7}], v{VL16}, s[{SWS}:{SWS+3}], s58 offen offset:2048 sc1")
    a(f"buffer_load_dwordx4 v[{ZB}:{ZB+3}], v{VL16}, s[{SWS}:{SWS+3}], s59 offen sc1")
    a(f"buffer_load_dwordx4 v[{ZB+4}:{ZB+7}], v{VL16}, s[{SWS}:{SWS+3}], s59 offen offset:2048 sc1")
    for q in range(4):
        a(f"buffer_load_dwordx4 v[{D32+4*q}:{D32+4*q+3}], v{VL16}, s[{STB}:{STB+3}], 0 offen offset:{q*1024}")
    a(f"s_lshl_b32 s57, s{T}, 13")
    a(f"s_add_u32 s57, s57, {TBL_TW}")
    a("s_add_u32 s55, s57, 4096")
    for r4 in range(4):
        a(f"buffer_load_dwordx4 v[{64+4*r4}:{64+4*r4+3}], v{VL16}, s[{STB}:{STB+3}], s57 offen offset:{r4*1024}")
    for r4 in range(4):
        a(f"buffer_load_dwordx4 v[{80+4*r4}:{80+4*r4+3}], v{VL16}, s[{STB}:{STB+3}], s55 offen offset:{r4*1024}")
    a(f"s_lshl_b32 s57, s{T}, 12")
    a(f"s_add_u32 s57, s57, {TBL_D64}")
    a("s_add_u32 s55, s57, 8192")
    for q in range(4):
        a(f"buffer_load_dwordx4 v[{D64+4*q}:{D64+4*q+3}], v{VL16}, s[{STB}:{STB+3}], s57 offen offset:{q*1024}")
    for q in range(4):
        a(f"buffer_load_dwordx4 v[{D64+16+4*q}:{D64+16+4*q+3}], v{VL16}, s[{STB}:{STB+3}], s55 offen offset:{q*1024}")
    a("s_mov_b32 s54, 0x3f800000")
    a(f"s_cmp_eq_u32 s{SG}, 1")
    a("s_cselect_b32 s54, 0xbf800000, s54")
    a(f"s_cmp_eq_u32 s{E}, 0")
    a("s_cselect_b32 s54, 0, s54")
    a("s_waitcnt vmcnt(16)")
    cosf = lambda kk: D32 + 8*kk; sinf = lambda kk: D32 + 8*kk + 4
    for (acc, z, f) in ((0, ZA, cosf), (16, ZA, sinf), (32, ZB, cosf), (48, ZB, sinf)):
        a(f"{M32} v[{acc}:{acc+15}], v[{z}:{z+3}], v[{f(0)}:{f(0)+3}], 0")
    for (acc, z, f) in ((0, ZA, cosf), (16, ZA, sinf), (32, ZB, cosf), (48, ZB, sinf)):
        a(f"{M32} v[{acc}:{acc+15}], v[{z+4}:{z+7}], v[{f(1)}:{f(1)+3}], v[{acc}:{acc+15}]")
    a("s_waitcnt vmcnt(8)")
    for r in range(16): a(f"v_fma_f32 v{r}, s54, v{48+r}, v{r}")
    for r in range(16): a(f"v_fma_f32 v{32+r}, s54, v{32+r}, -v{16+r}")
    for r in range(16):
        a(f"v_mul_f32 v{16+r}, v{r}, v{64+r}")
        a(f"v_mul_f32 v{48+r}, v{32+r}, v{64+r}")
        a(f"v_fma_f32 v{16+r}, v{32+r}, v{80+r}, v{16+r}")
        a(f"v_fma_f32 v{48+r}, -v{r}, v{80+r}, v{48+r}")
    UR, UI = 192, 200
    for q in range(8): a(f"v_cvt_pk_bf16_f32 v{UR+q}, v{16+2*q}, v{17+2*q}")
    for q in range(8): a(f"v_cvt_pk_bf16_f32 v{UI+q}, v{48+2*q}, v{49+2*q}")
    a("s_waitcnt vmcnt(0)")
    for T2p in range(2):
        acc = 64 + 16*T2p
        base = D64 + 16*T2p
        first = True
        for kk in range(2):
            for cs, U in ((0, UR), (1, UI)):
                f = base + (kk*2 + cs)*4
                c = "0" if first else f"v[{acc}:{acc+15}]"
                a(f"{M32} v[{acc}:{acc+15}], v[{f}:{f+3}], v[{U+4*kk}:{U+4*kk+3}], {c}")
                first = False
    a(f"s_lshl_b32 s56, s{W}, 12")
    a(f"s_add_u32 s56, s56, {LDS_FX}")
    Lt1 = a.newlabel("fft_t1"); Lx = a.newlabel("fft_x")
    a(f"v_add_u32 v128, s56, v{VL16}")
    a(f"s_xor_b32 s57, s{W}, 1")
    a(f"s_lshl_b32 s57, s57, 12")
    a(f"s_add_u32 s57, s57, {LDS_FX}")
    a(f"v_add_u32 v129, s57, v{VL16}")
    a(f"s_cmp_eq_u32 s{T}, 1")
    a(f"s_cbranch_scc1 {Lt1}")
    for q in range(4): a(f"ds_write_b128 v128, v[{80+4*q}:{80+4*q+3}] offset:{q*1024}")
    a(f"s_branch {Lx}")
    a.label(Lt1)
    for q in range(4): a(f"ds_write_b128 v128, v[{64+4*q}:{64+4*q+3}] offset:{q*1024}")
    for r in range(16): a(f"v_mov_b32 v{64+r}, v{80+r}")
    a.label(Lx)
    a("s_waitcnt lgkmcnt(0)")
    a("s_barrier")
    for q in range(4): a(f"ds_read_b128 v[{80+4*q}:{80+4*q+3}], v129 offset:{q*1024}")
    a("s_waitcnt lgkmcnt(0)")
    for r in range(16): a(f"v_add_f32 v{64+r}, v{64+r}, v{80+r}")
    for q in range(8): a(f"v_cvt_pk_bf16_f32 v{80+q}, v{64+2*q}, v{65+2*q}")
    a(f"s_sub_u32 s56, 512, s{E}")
    a(f"s_cmp_eq_u32 s{E}, 0")
    a("s_cselect_b32 s56, 256, s56")
    a(f"s_cmp_eq_u32 s{SG}, 0")
    a(f"s_cselect_b32 s56, s{E}, s56")
    a("s_lshl_b32 s56, s56, 12")
    a(f"s_lshl_b32 s57, s{T}, 11")
    a("s_add_u32 s56, s56, s57")
    a(f"s_add_u32 s56, s56, {WS_Y:#x}")
    a(f"v_and_b32 v1, 31, v{VLANE}")
    a("v_lshlrev_b32 v1, 6, v1")
    a(f"v_lshrrev_b32 v2, 5, v{VLANE}")
    a("v_lshl_add_u32 v1, v2, 5, v1")
    a(f"buffer_store_dwordx4 v[80:83], v1, s[{SWS}:{SWS+3}], s56 offen {sc}")
    a(f"buffer_store_dwordx4 v[84:87], v1, s[{SWS}:{SWS+3}], s56 offen offset:16 {sc}")

def phase3(a, st):
    TAU3, CTG = 46, 47
    WF = 128
    a("s_and_b32 s50, s2, 7")
    a("s_lshr_b32 s53, s2, 3")
    a("s_and_b32 s54, s53, 3")
    a("s_lshr_b32 s53, s53, 2")
    a("s_lshl_b32 s50, s50, 3")
    a(f"s_add_u32 s{TAU3}, s50, s53")
    a(f"s_lshl_b32 s{CTG}, s54, 2")
    a(f"s_add_u32 s{CTG}, s{CTG}, s{TL}")
    a(f"v_lshlrev_b32 v{VT0}, 4, v{VLANE}")
    publish(a, 74)
    a(f"s_mov_b32 s75, {FL2:#x}")
    poll(a, st, 75, 0xffffffff, 0xffffffff, True)
    st("flags2")
    Lne = a.newlabel("noepoch")
    a(f"s_lshl_b32 s56, s2, 3")
    a(f"s_or_b32 s56, s56, s{W}")
    a("s_cmp_lg_u32 s56, 0")
    a(f"s_cbranch_scc1 {Lne}")
    a(f"v_mov_b32 v120, s{TAG}")
    a("v_mov_b32 v121, 0")
    a(f"s_mov_b32 s56, {FL_EPOCH:#x}")
    a("s_mov_b64 exec, 1")
    a(f"buffer_store_dword v120, v121, s[{SWS}:{SWS+3}], s56 offen sc1")
    a("s_mov_b64 exec, -1")
    a.label(Lne)
    a(f"s_lshl_b32 s55, s{TAU3}, 15")
    a(f"s_add_u32 s55, s55, {WS_O:#x}")
    a(f"s_lshl_b32 s56, s{W}, 12")
    a(f"v_add_u32 v1, s56, v{VT0}")
    a("s_mov_b32 m0, s56")
    for q in range(4):
        a(f"buffer_load_dwordx4 v1, s[{SWS}:{SWS+3}], s55 offen offset:{q*1024} sc1 lds")
    a(f"s_lshl_b32 s54, s{HH}, 14")
    a(f"s_lshl_b32 s56, s{CTG}, 15")
    a("s_add_u32 s56, s56, s54")
    a(f"s_add_u32 s56, s56, {WS_WOF:#x}")
    for h in range(16):
        if h % 4 == 0 and h: a("s_add_u32 s56, s56, 4096")
        a(f"buffer_load_dwordx4 v[{WF+4*h}:{WF+4*h+3}], v{VT0}, s[{SWS}:{SWS+3}], s56 offen offset:{(h%4)*1024} sc1")
    a(f"v_and_b32 v3, 31, v{VLANE}")
    a("v_lshlrev_b32 v6, 12, v3")
    a(f"v_lshrrev_b32 v7, 5, v{VLANE}")
    a("v_lshl_add_u32 v6, v7, 5, v6")
    a(f"s_lshl_b32 s57, s{CTG}, 17")
    a(f"s_lshl_b32 s58, s{TAU3}, 6")
    a("s_add_u32 s57, s57, s58")
    a(f"s_lshl_b32 s58, s{HH}, 4")
    a("s_add_u32 s57, s57, s58")
    a(f"s_add_u32 s57, s57, {WS_Y:#x}")
    a(f"buffer_load_dwordx4 v[112:115], v6, s[{SWS}:{SWS+3}], s57 offen sc1")
    a("v_lshlrev_b32 v8, 6, v7")
    a(f"s_lshl_b32 s58, s{TAU3}, 7")
    a(f"s_lshl_b32 s59, s{HH}, 5")
    a("s_add_u32 s58, s58, s59")
    a(f"s_add_u32 s58, s58, {WS_G:#x}")
    a(f"buffer_load_dwordx4 v[116:119], v8, s[{SWS}:{SWS+3}], s58 offen sc1")
    a(f"buffer_load_dwordx4 v[120:123], v8, s[{SWS}:{SWS+3}], s58 offen offset:16 sc1")
    srd(a, SOUT, 6, 7, 2048 * 1024)
    a("v_lshrrev_b32 v4, 2, v3")
    a("v_and_b32 v4, 1, v4")
    a("v_lshlrev_b32 v4, 4, v4")
    a("v_lshrrev_b32 v5, 3, v3")
    a("v_lshl_add_u32 v4, v5, 2, v4")
    a("v_and_b32 v5, 3, v3")
    a("v_add_u32 v4, v4, v5")
    a(f"v_and_b32 v5, 32, v{VLANE}")
    a("v_add_u32 v4, v4, v5")
    a("v_lshlrev_b32 v4, 4, v4")
    a("v_add_u32 v4, s54, v4")
    a("s_waitcnt vmcnt(19)")
    a("s_barrier")
    st("oland")
    OFR = 32
    for h in range(16): a(f"ds_read_b128 v[{OFR+4*h}:{OFR+4*h+3}], v4 offset:{h*1024}")
    for h in range(16):
        a(f"s_waitcnt vmcnt({3 + 15 - h}) lgkmcnt({15 - h})")
        c = "0" if h == 0 else "v[16:31]"
        a(f"{M32} v[16:31], v[{OFR+4*h}:{OFR+4*h+3}], v[{WF+4*h}:{WF+4*h+3}], {c}")
    st("p3mfma")
    a("s_barrier")
    a(f"s_lshl_b32 s56, s{W}, 11")
    a(f"v_add_u32 v9, s56, v{VT0}")
    a(f"s_xor_b32 s57, s{W}, 4")
    a("s_lshl_b32 s57, s57, 11")
    a(f"v_add_u32 v10, s57, v{VT0}")
    Lk1 = a.newlabel("P3_k1"); Lx = a.newlabel("P3_x")
    a(f"s_cmp_eq_u32 s{HH}, 1")
    a(f"s_cbranch_scc1 {Lk1}")
    a("ds_write_b128 v9, v[24:27]"); a("ds_write_b128 v9, v[28:31] offset:1024")
    a(f"s_branch {Lx}")
    a.label(Lk1)
    a("ds_write_b128 v9, v[16:19]"); a("ds_write_b128 v9, v[20:23] offset:1024")
    for r in range(8): a(f"v_mov_b32 v{16+r}, v{24+r}")
    a.label(Lx)
    a("s_waitcnt lgkmcnt(0)")
    a("s_barrier")
    a("ds_read_b128 v[32:35], v10"); a("ds_read_b128 v[36:39], v10 offset:1024")
    a("s_waitcnt vmcnt(0) lgkmcnt(0)")
    for r in range(8): a(f"v_add_f32 v{16+r}, v{16+r}, v{32+r}")
    for q in range(4):
        a(f"v_lshlrev_b32 v{40+2*q}, 16, v{112+q}")
        a(f"v_and_b32 v{41+2*q}, 0xffff0000, v{112+q}")
    for r in range(8):
        a(f"v_sub_f32 v{40+r}, v{40+r}, v{16+r}")
        a(f"v_fma_f32 v{16+r}, v{116+r}, v{40+r}, v{16+r}")
    for q in range(4): a(f"v_cvt_pk_bf16_f32 v{40+q}, v{16+2*q}, v{17+2*q}")
    PITCH = 272
    a("v_lshlrev_b32 v11, 4, v7")
    a(f"s_lshl_b32 s56, s{HH}, 3")
    a("v_add_u32 v11, s56, v11")
    a(f"v_mul_u32_u24 v11, {PITCH}, v11")
    a(f"s_lshl_b32 s56, s{TL}, 6")
    a(f"s_add_u32 s56, s56, 16384")
    a("v_lshl_add_u32 v11, v3, 1, v11")
    a("v_add_u32 v11, s56, v11")
    for r in range(8):
        op = "ds_write_b16" if r % 2 == 0 else "ds_write_b16_d16_hi"
        a(f"{op} v11, v{40 + r//2} offset:{r*PITCH}")
    a("s_waitcnt lgkmcnt(0)")
    a("s_barrier")
    a(f"s_lshl_b32 s56, s{W}, 2")
    a(f"v_lshrrev_b32 v12, 4, v{VLANE}")
    a("v_add_u32 v12, s56, v12")
    a(f"v_and_b32 v13, 15, v{VLANE}")
    a(f"v_mul_u32_u24 v14, {PITCH}, v12")
    a("v_lshl_add_u32 v14, v13, 4, v14")
    a("ds_read_b128 v[32:35], v14 offset:16384")
    a("v_lshlrev_b32 v12, 16, v12")
    a("v_lshl_add_u32 v12, v13, 4, v12")
    a(f"s_lshl_b32 s56, s{TAU3}, 10")
    a(f"s_lshr_b32 s57, s{CTG}, 2")
    a("s_lshl_b32 s57, s57, 8")
    a("s_add_u32 s56, s56, s57")
    a("s_waitcnt lgkmcnt(0)")
    a(f"buffer_store_dwordx4 v[32:35], v12, s[{SOUT}:{SOUT+3}], s56 offen")

def gen_fused(a, name, stamps=False, sc="sc1"):
    kernel_header(a, name)
    L_done = a.newlabel("done")
    st = Stamps(a, stamps)
    a("s_cmp_ge_u32 s2, 256")
    a(f"s_cbranch_scc1 {L_done}")
    st("real0", real=True); st("t0")
    a("s_load_dwordx2 s[4:5], s[0:1], 0")
    a("s_load_dwordx4 s[8:11], s[0:1], 24")
    a("s_load_dwordx4 s[12:15], s[0:1], 48")
    a("s_load_dwordx4 s[16:19], s[0:1], 64") if False else None
    a("s_load_dwordx2 s[16:17], s[0:1], 64")
    a("s_load_dwordx2 s[6:7], s[0:1], 72")
    a("s_load_dwordx2 s[18:19], s[0:1], 88")
    a("s_and_b32 s46, s2, 3")
    a("s_lshl_b32 s46, s46, 2")
    a("s_lshr_b32 s47, s2, 3")
    a("s_and_b32 s48, s47, 3")
    a(f"s_add_u32 s{G}, s46, s48")
    a("s_lshr_b32 s47, s47, 2")
    a("s_bfe_u32 s48, s2, 0x10002")
    a("s_lshl_b32 s48, s48, 3")
    a(f"s_add_u32 s{J}, s47, s48")
    a("v_lshrrev_b32 v1, 6, v0")
    a("v_and_b32 v2, 63, v0")
    a(f"v_readfirstlane_b32 s{W}, v1")
    a(f"s_and_b32 s{TL}, s{W}, 3")
    a(f"s_lshr_b32 s{HH}, s{W}, 2")
    a(f"s_lshl_b32 s{TAU}, s{J}, 2")
    a(f"s_add_u32 s{TAU}, s{TAU}, s{TL}")
    phase1_pre = None
    phase1(a, st, sc)
    a("s_waitcnt lgkmcnt(0)")
    a(f"s_add_u32 s{TAG}, s{TAG}, 1")
    st("p1end")
    phase2(a, st, sc)
    st("attn_done")
    Lsk = a.newlabel("nofft"); Lj = a.newlabel("fftjoin")
    a(f"s_cmp_ge_u32 s{W}, 4")
    a(f"s_cbranch_scc1 {Lsk}")
    fft(a, st, sc)
    a(f"s_branch {Lj}")
    a.label(Lsk)
    a("s_barrier")
    a.label(Lj)
    st("fft_done")
    phase3(a, st)
    st("pre_final")
    a("s_waitcnt vmcnt(0)")
    st("end"); st("real1", real=True)
    st.dump(SWS, W, region=0)
    gen_fused.names = st.names
    a.label(L_done)
    a("s_endpgm")
    emit_table(a, "fft_tbl")
    return 256
```

```python
from asmlib import *
from common import *
from tables import *

SA, SBr, NM, OA = 0, 16, 32, 48
QF = 64; KF = [68, 72]; VF = [[76, 80], [84, 88]]; P0 = 92; P1 = 96
VK, VKN, VV, VVN, VKB, VVB, VLANE, VT0, VT1, VDMA = 100, 101, 102, 103, 104, 105, 106, 107, 108, 109
TT = 112

X_ = {}
def attn_tile(a, t):
    X = SA if t % 2 == 0 else SBr
    Y = SBr if t % 2 == 0 else SA
    Kn = KF[(t + 1) % 2]; Kf = KF[t % 2]
    Vc = VF[t % 2]; Vn = VF[(t + 1) % 2]
    E = lambda i: a(f"v_exp_f32 v{TT+i}, v{X+i}")
    def C(i):
        dst = (P0 + i // 2) if i < 8 else (P1 + (i - 8) // 2)
        a(f"v_cvt_pk_bf16_f32 v{dst}, v{TT+i}, v{TT+i+1}")
    M = "v_mfma_f32_32x32x16_bf16"
    a("s_waitcnt lgkmcnt(0)")
    a(f"{M} v[{Y}:{Y+15}], v[{Kn}:{Kn+3}], v[{QF}:{QF+3}], v[{NM}:{NM+15}]")
    E(0); E(1); C(14); E(2); E(3); C(0); E(4); E(5)
    a(f"{M} v[{OA}:{OA+15}], v[{Vn[1]}:{Vn[1]+3}], v[{P1}:{P1+3}], v[{OA}:{OA+15}]")
    reads(a, t, Vn, Kf)
    C(2); E(6); E(7); C(4); E(8); E(9); C(6); E(10); E(11)
    a(f"{M} v[{OA}:{OA+15}], v[{Vc[0]}:{Vc[0]+3}], v[{P0}:{P0+3}], v[{OA}:{OA+15}]")
    C(8); E(12); E(13); C(10); E(14); E(15); C(12)

def reads(a, t, Vn, Kf):
    if not X_.get("noexec"): a("s_mov_b64 exec, s[70:71]")
    if t < 3: va, off = VV, (t + 1) * 2048
    else: va, off = VVN, 0
    if not X_.get("nods"):
        a(f"ds_read_b128 v[{Vn[0]}:{Vn[0]+3}], v{va} offset:{off + 1024}")
        a(f"ds_read_b128 v[{Vn[1]}:{Vn[1]+3}], v{va} offset:{off + 1536}")
    if not X_.get("noexec"): a("s_mov_b64 exec, -1")
    if t < 2: ka, off = VK, (t + 2) * 2048
    else: ka, off = VKN, (t - 2) * 2048
    if not X_.get("nods"): a(f"ds_read_b128 v[{Kf}:{Kf+3}], v{ka} offset:{off}")

def gen_k2(a, name="k2_kernel", sc="", stamps=False, do_fft=True):
    kernel_header(a, name)
    L_done = a.newlabel("K2_done")
    st = Stamps(a, stamps)
    a("s_cmp_ge_u32 s2, 256")
    a(f"s_cbranch_scc1 {L_done}")
    st("real0", real=True); st("t0")
    a("s_load_dwordx2 s[18:19], s[0:1], 88")
    G, J, W, TL, HH, TAU = 40, 41, 42, 43, 44, 51
    decode_gj(a, G, J, 45)
    a("v_lshrrev_b32 v1, 6, v0")
    a(f"v_and_b32 v{VLANE}, 63, v0")
    a(f"v_readfirstlane_b32 s{W}, v1")
    a(f"s_and_b32 s{TL}, s{W}, 3")
    a(f"s_lshr_b32 s{HH}, s{W}, 2")
    a(f"s_lshl_b32 s{TAU}, s{J}, 2")
    a(f"s_add_u32 s{TAU}, s{TAU}, s{TL}")
    SWS = 28
    a(f"s_lshl_b32 s60, s{W}, 11")
    a(f"v_lshlrev_b32 v{VT0}, 4, v{VLANE}")
    a(f"v_add_u32 v{VDMA}, s60, v{VT0}")
    a("s_waitcnt lgkmcnt(0)")
    srd(a, SWS, 18, 19, WS_SIZE)
    a(f"s_lshl_b32 s56, s{TAU}, 5")
    a(f"s_lshl_b32 s57, s{G}, 1")
    a("s_add_u32 s56, s56, s57")
    a(f"s_add_u32 s56, s56, s{HH}")
    a("s_lshl_b32 s52, s56, 10")
    a(f"s_add_u32 s56, s52, {WS_Q:#x}")
    a(f"buffer_load_dwordx4 v[{QF}:{QF+3}], v{VT0}, s[{SWS}:{SWS+3}], s56 offen")
    a(f"s_lshl_b32 s62, s{G}, 18")
    if WS_KV: a(f"s_add_u32 s62, s62, {WS_KV:#x}")
    a(f"s_mov_b32 s61, s{J}")
    a("s_mov_b32 s63, 0")
    def issue_chunk():
        a("s_lshl_b32 s56, s61, 14")
        a("s_add_u32 s56, s56, s62")
        a("s_add_u32 m0, s63, s60")
        a(f"buffer_load_dwordx4 v{VDMA}, s[{SWS}:{SWS+3}], s56 offen lds")
        a(f"buffer_load_dwordx4 v{VDMA}, s[{SWS}:{SWS+3}], s56 offen offset:1024 lds")
        a("s_add_u32 s61, s61, 1")
        a("s_and_b32 s61, s61, 15")
        a("s_add_u32 s63, s63, 16384")
        a("s_and_b32 s63, s63, 0x1ffff")
    Li = a.newlabel("K2_pre")
    a("s_mov_b32 s64, 0")
    a.label(Li)
    issue_chunk()
    a("s_add_u32 s64, s64, 1")
    a("s_cmp_lt_u32 s64, 7")
    a(f"s_cbranch_scc1 {Li}")
    st("issued")
    a(f"s_lshl_b32 s56, s{HH}, 13")
    a(f"v_add_u32 v{VKB}, s56, v{VT0}")
    a(f"v_and_b32 v{VT1}, 15, v{VLANE}")
    a(f"v_lshrrev_b32 v1, 5, v{VLANE}")
    a(f"v_lshl_add_u32 v{VT1}, v1, 4, v{VT1}")
    a(f"v_lshlrev_b32 v{VT1}, 4, v{VT1}")
    a(f"v_add_u32 v{VVB}, s56, v{VT1}")
    a(f"v_mov_b32 v{VK}, v{VKB}")
    a(f"v_mov_b32 v{VV}, v{VVB}")
    a(f"v_add_u32 v{VKN}, 16384, v{VKB}")
    a(f"v_add_u32 v{VVN}, 16384, v{VVB}")
    a("s_mov_b32 s70, 0xffff")
    a("s_mov_b32 s71, 0xffff")
    a(f"v_and_b32 v1, 31, v{VLANE}")
    a("v_cmp_eq_u32 vcc, 16, v1")
    a("v_mov_b32 v2, 0x3f803f80")
    for s_ in (76, 77, 78, 79, 80, 81, 82, 83, 84, 85, 86, 87, 88, 89, 90, 91):
        a(f"v_cndmask_b32 v{s_}, 0, v2, vcc")
    for r in range(4): a(f"v_mov_b32 v{P1+r}, 0")
    a(f"v_mov_b32 v{TT+14}, 0"); a(f"v_mov_b32 v{TT+15}, 0")
    for r in range(16): a(f"v_mov_b32 v{OA+r}, 0")
    a("s_waitcnt vmcnt(10)")
    a("s_barrier")
    st("bar0")
    issue_chunk()
    a(f"ds_read_b128 v[{KF[0]}:{KF[0]+3}], v{VK}")
    a(f"ds_read_b128 v[{KF[1]}:{KF[1]+3}], v{VK} offset:2048")
    a("s_mov_b64 exec, s[70:71]")
    a(f"ds_read_b128 v[{VF[0][0]}:{VF[0][0]+3}], v{VV} offset:1024")
    a(f"ds_read_b128 v[{VF[0][1]}:{VF[0][1]+3}], v{VV} offset:1536")
    a("s_mov_b64 exec, -1")
    a("s_waitcnt lgkmcnt(0)")
    a(f"v_mfma_f32_32x32x16_bf16 v[{SA}:{SA+15}], v[{KF[0]}:{KF[0]+3}], v[{QF}:{QF+3}], 0")
    a(f"v_max3_f32 v1, v{SA}, v{SA+1}, v{SA+2}") if False else None
    a(f"v_max_f32 v{VT0}, v{SA}, v{SA+1}")
    for r in range(2, 16, 2): a(f"v_max3_f32 v{VT0}, v{VT0}, v{SA+r}, v{SA+r+1}")
    a(f"v_mov_b32 v{VT1}, v{VT0}")
    a(f"v_permlane32_swap_b32 v{VT0}, v{VT1}")
    a(f"v_max_f32 v{VT0}, v{VT0}, v{VT1}")
    for r in range(16): a(f"v_sub_f32 v{NM+r}, 0, v{VT0}")
    a(f"v_mfma_f32_32x32x16_bf16 v[{SA}:{SA+15}], v[{KF[0]}:{KF[0]+3}], v[{QF}:{QF+3}], v[{NM}:{NM+15}]")
    a("s_nop 7"); a("s_nop 3")
    a("s_mov_b32 s64, 0")
    a("s_mov_b32 s65, 16384")
    Lloop = a.newlabel("K2_loop"); Lnb = a.newlabel("K2_nobar")
    a.label(Lloop)
    for t in range(4): attn_tile(a, t)
    a("s_add_u32 s64, s64, 1")
    a(f"v_mov_b32 v{VK}, v{VKN}")
    a(f"v_mov_b32 v{VV}, v{VVN}")
    a("s_add_u32 s65, s65, 16384")
    a("s_and_b32 s65, s65, 0x1ffff")
    a(f"v_add_u32 v{VKN}, s65, v{VKB}")
    a(f"v_add_u32 v{VVN}, s65, v{VVB}")
    a("s_cmp_ge_u32 s64, 16")
    Lend = a.newlabel("K2_end")
    a(f"s_cbranch_scc1 {Lend}")
    Lw0 = a.newlabel("K2_w0"); Lw1 = a.newlabel("K2_w1")
    a("s_cmp_ge_u32 s64, 10")
    a(f"s_cbranch_scc1 {Lw0}")
    a("s_waitcnt vmcnt(10)")
    a(f"s_branch {Lw1}")
    a.label(Lw0)
    a("s_waitcnt vmcnt(0)")
    a.label(Lw1)
    if not X_.get("nobar"): a("s_barrier")
    a("s_cmp_gt_u32 s64, 8")
    a(f"s_cbranch_scc1 {Lloop}")
    if not X_.get("nodma"): issue_chunk()
    a(f"s_branch {Lloop}")
    a.label(Lend)
    st("loopend")
    a(f"v_cvt_pk_bf16_f32 v{P1+3}, v{TT+14}, v{TT+15}")
    a("s_waitcnt lgkmcnt(0)")
    a(f"v_mfma_f32_32x32x16_bf16 v[{OA}:{OA+15}], v[{VF[1][1]}:{VF[1][1]+3}], v[{P1}:{P1+3}], v[{OA}:{OA+15}]")
    a(f"v_mov_b32 v{VT0}, v{OA+8}")
    a(f"v_mov_b32 v{VT1}, v{OA+8}")
    a(f"v_permlane32_swap_b32 v{VT0}, v{VT1}")
    a(f"v_rcp_f32 v{VT0}, v{VT0}")
    for r in range(8): a(f"v_mul_f32 v{OA+r}, v{OA+r}, v{VT0}")
    for r in range(4): a(f"v_cvt_pk_bf16_f32 v{P0+r}, v{OA+2*r}, v{OA+2*r+1}")
    a(f"v_lshlrev_b32 v{VT0}, 4, v{VLANE}")
    a(f"s_add_u32 s56, s52, {WS_O:#x}")
    a(f"buffer_store_dwordx4 v[{P0}:{P0+3}], v{VT0}, s[{SWS}:{SWS+3}], s56 offen {sc}")
    st("attn_done")
    if do_fft:
        Lskip = a.newlabel("K2_fftskip")
        a(f"s_cmp_ge_u32 s{W}, 4")
        a(f"s_cbranch_scc1 {Lskip}")
        gen_fft(a, G, J, W, SWS, sc)
        a.label(Lskip)
    st("pre_final")
    a("s_waitcnt vmcnt(0)")
    st("end"); st("real1", real=True)
    st.dump(SWS, W, region=1)
    gen_k2.names = st.names
    a.label(L_done)
    a("s_endpgm")
    emit_table(a, "fft_tbl")
    return 200

def gen_fft(a, G, J, W, SWS, sc):
    E, T, SG, STB = 46, 47, 48, 32
    VL16 = 107
    a(f"s_lshl_b32 s{E}, s{G}, 4")
    a(f"s_add_u32 s{E}, s{E}, s{J}")
    a(f"s_and_b32 s{T}, s{W}, 1")
    a(f"s_lshr_b32 s{SG}, s{W}, 1")
    Lpc = a.newlabel("pc")
    a("s_getpc_b64 s[36:37]")
    a.label(Lpc)
    a(f"s_add_u32 s36, s36, fft_tbl-{Lpc}")
    a("s_addc_u32 s37, s37, 0")
    srd(a, STB, 36, 37, TBL_SIZE)
    a(f"v_lshlrev_b32 v{VL16}, 4, v106")
    a(f"s_lshl_b32 s56, s{E}, 13")
    a(f"s_lshl_b32 s57, s{T}, 10")
    a("s_add_u32 s56, s56, s57")
    a(f"s_add_u32 s56, s56, {WS_Z:#x}")
    a(f"s_cmp_eq_u32 s{E}, 0")
    a(f"s_cselect_b32 s58, s{SG}, 0")
    a("s_lshl_b32 s58, s58, 12")
    a("s_add_u32 s58, s58, s56")
    a("s_add_u32 s59, s56, 4096")
    ZA, ZB, D32, D64, TW = 112, 120, 128, 144, 0
    TW = 176 - 0
    a(f"buffer_load_dwordx4 v[{ZA}:{ZA+3}], v{VL16}, s[{SWS}:{SWS+3}], s58 offen")
    a(f"buffer_load_dwordx4 v[{ZA+4}:{ZA+7}], v{VL16}, s[{SWS}:{SWS+3}], s58 offen offset:2048")
    a(f"buffer_load_dwordx4 v[{ZB}:{ZB+3}], v{VL16}, s[{SWS}:{SWS+3}], s59 offen")
    a(f"buffer_load_dwordx4 v[{ZB+4}:{ZB+7}], v{VL16}, s[{SWS}:{SWS+3}], s59 offen offset:2048")
    for q in range(4):
        a(f"buffer_load_dwordx4 v[{D32+4*q}:{D32+4*q+3}], v{VL16}, s[{STB}:{STB+3}], 0 offen offset:{q*1024}")
    a(f"s_lshl_b32 s57, s{T}, 13")
    a(f"s_add_u32 s57, s57, {TBL_TW}")
    a("s_add_u32 s55, s57, 4096")
    for r4 in range(4):
        a(f"buffer_load_dwordx4 v[{64+4*r4}:{64+4*r4+3}], v{VL16}, s[{STB}:{STB+3}], s57 offen offset:{r4*1024}")
    for r4 in range(4):
        a(f"buffer_load_dwordx4 v[{80+4*r4}:{80+4*r4+3}], v{VL16}, s[{STB}:{STB+3}], s55 offen offset:{r4*1024}")
    a(f"s_lshl_b32 s57, s{T}, 12")
    a(f"s_add_u32 s57, s57, {TBL_D64}")
    a("s_add_u32 s55, s57, 8192")
    for q in range(4):
        a(f"buffer_load_dwordx4 v[{D64+4*q}:{D64+4*q+3}], v{VL16}, s[{STB}:{STB+3}], s57 offen offset:{q*1024}")
    for q in range(4):
        a(f"buffer_load_dwordx4 v[{D64+16+4*q}:{D64+16+4*q+3}], v{VL16}, s[{STB}:{STB+3}], s55 offen offset:{q*1024}")
    a("s_mov_b32 s54, 0x3f800000")
    a(f"s_cmp_eq_u32 s{SG}, 1")
    a("s_cselect_b32 s54, 0xbf800000, s54")
    a(f"s_cmp_eq_u32 s{E}, 0")
    a("s_cselect_b32 s54, 0, s54")
    a("s_waitcnt vmcnt(16)")
    M = "v_mfma_f32_32x32x16_bf16"
    cosf = lambda kk: D32 + 8*kk; sinf = lambda kk: D32 + 8*kk + 4
    for (acc, z, f) in ((0, ZA, cosf), (16, ZA, sinf), (32, ZB, cosf), (48, ZB, sinf)):
        a(f"{M} v[{acc}:{acc+15}], v[{z}:{z+3}], v[{f(0)}:{f(0)+3}], 0")
    for (acc, z, f) in ((0, ZA, cosf), (16, ZA, sinf), (32, ZB, cosf), (48, ZB, sinf)):
        a(f"{M} v[{acc}:{acc+15}], v[{z+4}:{z+7}], v[{f(1)}:{f(1)+3}], v[{acc}:{acc+15}]")
    a("s_waitcnt vmcnt(8)")
    for r in range(16):
        a(f"v_fma_f32 v{r}, s54, v{48+r}, v{r}")
    for r in range(16):
        a(f"v_fma_f32 v{32+r}, s54, v{32+r}, -v{16+r}")
    for r in range(16):
        a(f"v_mul_f32 v{16+r}, v{r}, v{64+r}")
        a(f"v_mul_f32 v{48+r}, v{32+r}, v{64+r}")
        a(f"v_fma_f32 v{16+r}, v{32+r}, v{80+r}, v{16+r}")
        a(f"v_fma_f32 v{48+r}, -v{r}, v{80+r}, v{48+r}")
    UR, UI = 96, 104
    UR, UI = 176, 184
    for q in range(8): a(f"v_cvt_pk_bf16_f32 v{UR+q}, v{16+2*q}, v{17+2*q}")
    for q in range(8): a(f"v_cvt_pk_bf16_f32 v{UI+q}, v{48+2*q}, v{49+2*q}")
    a("s_waitcnt vmcnt(0)")
    for T2p in range(2):
        acc = 64 + 16*T2p
        base = D64 + 16*T2p
        first = True
        for kk in range(2):
            for cs, U in ((0, UR), (1, UI)):
                f = base + (kk*2 + cs)*4
                c = "0" if first else f"v[{acc}:{acc+15}]"
                a(f"{M} v[{acc}:{acc+15}], v[{f}:{f+3}], v[{U+4*kk}:{U+4*kk+3}], {c}")
                first = False
    a("s_barrier")
    a(f"s_lshl_b32 s56, s{W}, 12")
    a(f"v_add_u32 v1, s56, v{VL16}") if False else None
    Lt1 = a.newlabel("fft_t1"); Lx = a.newlabel("fft_x")
    a(f"v_add_u32 v112, s56, v{VL16}")
    a(f"s_xor_b32 s57, s56, 4096")
    a(f"v_add_u32 v113, s57, v{VL16}")
    a(f"s_cmp_eq_u32 s{T}, 1")
    a(f"s_cbranch_scc1 {Lt1}")
    for q in range(4): a(f"ds_write_b128 v112, v[{80+4*q}:{80+4*q+3}] offset:{q*1024}")
    a(f"s_branch {Lx}")
    a.label(Lt1)
    for q in range(4): a(f"ds_write_b128 v112, v[{64+4*q}:{64+4*q+3}] offset:{q*1024}")
    for r in range(16): a(f"v_mov_b32 v{64+r}, v{80+r}")
    a.label(Lx)
    a("s_waitcnt lgkmcnt(0)")
    a("s_barrier")
    for q in range(4): a(f"ds_read_b128 v[{80+4*q}:{80+4*q+3}], v113 offset:{q*1024}")
    a("s_waitcnt lgkmcnt(0)")
    for r in range(16): a(f"v_add_f32 v{64+r}, v{64+r}, v{80+r}")
    for q in range(8): a(f"v_cvt_pk_bf16_f32 v{80+q}, v{64+2*q}, v{65+2*q}")
    a(f"s_sub_u32 s56, 512, s{E}")
    a(f"s_cmp_eq_u32 s{E}, 0")
    a("s_cselect_b32 s56, 256, s56")
    a(f"s_cmp_eq_u32 s{SG}, 0")
    a(f"s_cselect_b32 s56, s{E}, s56")
    a("s_lshl_b32 s56, s56, 12")
    a(f"s_lshl_b32 s57, s{T}, 11")
    a("s_add_u32 s56, s56, s57")
    a(f"s_add_u32 s56, s56, {WS_Y:#x}")
    a("v_and_b32 v1, 31, v106")
    a("v_lshlrev_b32 v1, 6, v1")
    a("v_lshrrev_b32 v2, 5, v106")
    a("v_lshl_add_u32 v1, v2, 5, v1")
    a(f"buffer_store_dwordx4 v[80:83], v1, s[{SWS}:{SWS+3}], s56 offen {sc}")
    a(f"buffer_store_dwordx4 v[84:87], v1, s[{SWS}:{SWS+3}], s56 offen offset:16 {sc}")
```

```python
import sys
from build import *
import fused
def build1(fn, name, block, lds, path):
    a = Asm()
    v = fn(a, name)
    n = fix_hazards(a)
    hdr = open("cdna_kernels/" + NAME + ".s.ref").read().split("; Override")[0]
    out = hdr + f"; @launch grid=(256,1,1) block=({block},1,1) lds={lds}\n"
    out += '.amdgcn_target "amdgcn-amd-amdhsa--gfx950"\n' + a.text() + kernel_desc(name, v)
    open(path, "w").write(out)
    print("wrote", path, "nops", n, "bytes", len(out))
if __name__ == "__main__":
    nm = NAME + "_kernel"
    build1(lambda a,n: fused.gen_fused(a,n), nm, 512, 163840, "f1.s")
    import common
    common.Stamps.ALLREAL = True
    for tag, fl in (("a",{}),):
        fused.X_.clear(); fused.X_.update(fl)
        build1(lambda a,n: fused.gen_fused(a,n,stamps=True), nm, 512, 163840, f"f1st{tag}.s")
    print(",".join(fused.gen_fused.names))
```
